```python
import torch

def _softmax(x, axis=-1):
    return torch.softmax(x, dim=axis)
def _gelu(x):
    return torch.nn.functional.gelu(x, approximate="tanh")
def _silu(x):
    return torch.nn.functional.silu(x)
def _sigmoid(x):
    return torch.sigmoid(x)
def _layernorm(x, axis=-1, eps=1e-5):
    m = x.mean(dim=axis, keepdim=True)
    v = x.var(dim=axis, keepdim=True, unbiased=False)
    return (x - m) / torch.sqrt(v + eps)
def _scatter_add(tgt, idx, src, axis=0):
    return tgt.clone().index_add_(axis, idx, src)
def _segment_sum(src, seg, n):
    out = torch.zeros((n,) + src.shape[1:], dtype=src.dtype)
    return out.index_add_(0, seg, src)
def _pad(x, pw):
    flat = tuple(v for pair in reversed(pw) for v in pair)
    return torch.nn.functional.pad(x, flat)

kernel_name = 'standalone__gqa_softmax__prompt'

def setup_inputs():

    _w = (lambda a: (lambda t: t.to(torch.bfloat16) if t.is_floating_point() else t)(torch.as_tensor(a)))
    B, Hq, Hkv, Sq, Sk, D = 1, 32, 8, 2048, 2048, 128
    return {
        "q": _w((lambda *s: torch.randn(*s, dtype=torch.bfloat16) * 0.8)(B, Hq, Sq, D)),
        "k": _w((lambda *s: torch.randn(*s, dtype=torch.bfloat16) * 0.8)(B, Hkv, Sk, D)),
        "v": _w((lambda *s: torch.randn(*s, dtype=torch.bfloat16) * 0.05)(B, Hkv, Sk, D)),
    }

def reference(q, k, v):
    B, Hq, Sq, D = q.shape
    Hkv = k.shape[1]
    rep = Hq // Hkv
    k = (lambda x, n, axis: torch.repeat_interleave(x, n, dim=axis))(k, rep, axis=1)
    v = (lambda x, n, axis: torch.repeat_interleave(x, n, dim=axis))(v, rep, axis=1)
    scale = D ** -0.5
    scores = torch.einsum("bhqd,bhkd->bhqk", q, k) * scale
    p = _softmax(scores, axis=-1)
    return torch.einsum("bhqk,bhkd->bhqd", p, v)
```

```python
import re

def regs_of(tok):
    tok = tok.strip()
    neg = tok.lstrip('-')
    if neg.startswith('abs(') or neg.startswith('|'):
        neg = neg.replace('abs(', '').replace(')', '').replace('|', '')
    m = re.fullmatch(r'([vas])(\d+)', neg)
    if m: return [(m.group(1), int(m.group(2)))]
    m = re.fullmatch(r'([vas])\[(\d+):(\d+)\]', neg)
    if m: return [(m.group(1), i) for i in range(int(m.group(2)), int(m.group(3)) + 1)]
    if neg in ('vcc', 'exec', 'm0'): return [('x', neg)]
    return []

TRANS = ('v_exp_f32', 'v_log_f32', 'v_rcp_f32', 'v_rsq_f32', 'v_sqrt_f32')

class I:
    def __init__(self, text):
        self.text = text.strip()
        t = self.text.split(';')[0].strip()
        self.label = t.endswith(':')
        self.directive = t.startswith('.') and not self.label
        self.op = t.split()[0] if t else ''
        rest = t[len(self.op):].strip()
        ops = [o.strip() for o in rest.split(',')] if rest else []
        if ops:
            last = ops[-1].split()
            self.mods = last[1:]
            ops[-1] = last[0] if last else ''
        else:
            self.mods = []
        self.ops = ops
        op = self.op
        self.kind = 'other'
        R = []; W = []
        self.srcC = []; self.srcAB = []
        if self.label or self.directive or not op:
            self.kind = 'meta'
        elif op.startswith('v_mfma'):
            self.kind = 'mfma'; W = regs_of(ops[0]); self.srcAB = regs_of(ops[1]) + regs_of(ops[2]); self.srcC = regs_of(ops[3])
            R = self.srcAB + self.srcC
            self.passes = 4 if '16x16x32' in op else 8
        elif op.startswith('v_smfmac'):
            self.kind = 'mfma'; W = regs_of(ops[0]); self.srcAB = regs_of(ops[1]) + regs_of(ops[2]) + regs_of(ops[3]); self.srcC = regs_of(ops[0])
            R = self.srcAB + self.srcC
            self.passes = 4
        elif op.startswith('ds_read'):
            self.kind = 'ds'; W = regs_of(ops[0]); R = regs_of(ops[1])
        elif op.startswith('ds_write'):
            self.kind = 'ds'; R = sum((regs_of(o) for o in ops), [])
        elif op.startswith('buffer_load'):
            self.kind = 'vmem'
            if 'lds' in self.mods:
                R = sum((regs_of(o) for o in ops), []) + [('x', 'm0')]
            else:
                W = regs_of(ops[0]); R = sum((regs_of(o) for o in ops[1:]), [])
        elif op.startswith('buffer_store'):
            self.kind = 'vmem'; R = sum((regs_of(o) for o in ops), []); self.store = True
        elif op.startswith('global_load'):
            self.kind = 'vmem'; W = regs_of(ops[0]); R = sum((regs_of(o) for o in ops[1:]), [])
        elif op.startswith('v_permlane'):
            self.kind = 'valu'; W = regs_of(ops[0]) + regs_of(ops[1]); R = list(W)
        elif op.startswith('v_cmp'):
            self.kind = 'valu'; W = regs_of(ops[0]); R = sum((regs_of(o) for o in ops[1:]), [])
        elif op.startswith('v_'):
            self.kind = 'valu'; W = regs_of(ops[0]); R = sum((regs_of(o) for o in ops[1:]), [])
            if op.startswith('v_fmac') or op.startswith('v_writelane'): R += W
            if op.startswith('v_cndmask') and len(ops) == 3: R += [('x', 'vcc')]
        elif op.startswith('s_waitcnt'):
            self.kind = 'wait'
            m = re.search(r'vmcnt\((\d+)\)', t); self.vm = int(m.group(1)) if m else None
            m = re.search(r'lgkmcnt\((\d+)\)', t); self.lgkm = int(m.group(1)) if m else None
        elif op == 's_nop':
            self.kind = 'nop'; self.n = int(ops[0]) + 1
        elif op.startswith('s_load') or op.startswith('s_mem'):
            self.kind = 'smem'; W = regs_of(ops[0]); R = sum((regs_of(o) for o in ops[1:]), [])
        elif op.startswith('s_cmp') or op.startswith('s_cbranch') or op in ('s_branch', 's_barrier', 's_endpgm', 's_setprio', 's_sleep'):
            self.kind = 'salu'; R = sum((regs_of(o) for o in ops), [])
        elif op.startswith('s_'):
            self.kind = 'salu'; W = regs_of(ops[0]); R = sum((regs_of(o) for o in ops[1:]), [])
        else:
            raise ValueError("unknown op: " + text)
        self.R = set(R); self.W = set(W)
        self.trans = any(op.startswith(x) for x in TRANS)
    def __repr__(self): return self.text

def check(seq, name=""):
    errs = []
    ins = [x for x in seq if x.kind != 'meta']
    pos = []; p = 0
    for x in ins:
        pos.append(p); p += x.n if x.kind == 'nop' else 1
    def dist(i, j):
        return pos[j] - pos[i] - (ins[i].n if ins[i].kind == 'nop' else 1)
    lds_q = []
    vm_q = []
    smem_out = []
    for j, y in enumerate(ins):
        if y.kind == 'wait':
            if y.lgkm is not None:
                if y.lgkm == 0: smem_out = []
                while len(lds_q) > y.lgkm: lds_q.pop(0)
            if y.vm is not None:
                while len(vm_q) > y.vm: vm_q.pop(0)
        else:
            touch = y.R | y.W
            for i in lds_q:
                if ins[i].W & touch: errs.append(f"LDS result not waited: [{ins[i]}] -> [{y}]")
            for i in vm_q:
                if ins[i].W & touch: errs.append(f"VMEM result not waited: [{ins[i]}] -> [{y}]")
            for i in smem_out:
                if ins[i].W & touch: errs.append(f"SMEM result not waited: [{ins[i]}] -> [{y}]")
            if y.kind == 'ds': lds_q.append(j)
            if y.kind == 'vmem': vm_q.append(j)
            if y.kind == 'smem': smem_out.append(j)
            if len(lds_q) > 15 + 100: pass
        for i in range(j - 1, max(-1, j - 24), -1):
            x = ins[i]; d = dist(i, j)
            if d >= 20: break
            def need(n, why):
                if d < n: errs.append(f"hazard {why}: need {n} have {d}: [{x}] -> [{y}]")
            if x.kind == 'mfma':
                full = {4: 8, 8: 12}[x.passes]
                if y.kind == 'mfma':
                    if x.W & set(y.srcAB): need(full, "mfma D->AB")
                    if x.W & set(y.srcC):
                        if not (x.W == set(y.srcC) and x.passes == y.passes): need({4: 6, 8: 10}[x.passes], "mfma D->C overlap")
                    elif x.W & y.W: need(full, "mfma D->D waw")
                elif y.kind in ('valu', 'ds', 'vmem'):
                    if x.W & (y.R | y.W): need(full, "mfma D->valu/mem")
                    if y.kind == 'valu' and set(x.srcC) & y.W: need({4: 3, 8: 7}[x.passes], "mfma C war")
            if x.kind == 'valu':
                vw = {r for r in x.W if r[0] in 'va'}
                sw = {r for r in x.W if r[0] == 's' or r == ('x', 'vcc')}
                if y.kind == 'mfma' and vw & y.R: need(2, "valu->mfma")
                if x.trans and y.kind == 'valu' and not y.trans and vw & y.R: need(1, "trans->valu")
                if y.op.startswith('v_permlane') and vw & y.R: need(2, "valu->permlane")
                if (y.op.startswith('v_readlane') or y.op.startswith('v_readfirstlane')) and vw & y.R: need(1, "valu->readlane")
                if y.kind == 'vmem' and sw & y.R: need(5, "valu sgpr->vmem")
                if y.kind == 'valu' and sw & y.R: need(2, "valu sgpr->valu")
                if 'dpp' in y.text and vw & y.R: need(2, "valu->dpp")
            if x.kind == 'vmem' and getattr(x, 'store', False) and ('x4' in x.op or 'x3' in x.op):
                data = set(regs_of(x.ops[0]))
                if data & y.W: need(2, "store data war")
            if x.kind == 'salu' and ('x', 'm0') in x.W and y.kind == 'vmem' and ('x', 'm0') in y.R: need(1, "m0->lds dma")
    if errs:
        print(f"CHECK {name}: {len(errs)} problems")
        for e in errs[:40]: print("   ", e)
    return errs
```

```python
NAME = "standalone__gqa_softmax__prompt"

def wrap(body, grid=256, block=256, lds=0, vgpr=512, accum=256, sgpr=102, name=NAME, header_extra=""):
    return f"""; Kernarg layout for this problem (48 bytes, ptrs only, base s[0:1]):
{header_extra}; @launch grid=({grid},1,1) block=({block},1,1) lds={lds}
.amdgcn_target "amdgcn-amd-amdhsa--gfx950"
.text
.globl {name}_kernel
.p2align 8
.type {name}_kernel,@function
{name}_kernel:
{body}
.section .rodata,"a"
.p2align 6
.amdhsa_kernel {name}_kernel
  .amdhsa_next_free_vgpr {vgpr}
  .amdhsa_next_free_sgpr {sgpr}
  .amdhsa_accum_offset {accum}
  .amdhsa_group_segment_fixed_size 0
  .amdhsa_kernarg_size 48
  .amdhsa_user_sgpr_count 2
  .amdhsa_user_sgpr_kernarg_segment_ptr 1
  .amdhsa_system_sgpr_workgroup_id_x 1
.end_amdhsa_kernel
"""
```

```python
import sys, argparse, math
sys.path.insert(0, "work")
from common import wrap
from asmlib import I, check

class Opt:
    stamps = False
    exp64 = True
    unroll = 4
    force_slow = False
    thr = 0x53800000
    l2pf = False
    pad4 = True
    align = 3

V_O = 128
V_S = 96
V_P = 64
V_NM = 48
V_KR = 32
V_VR = 36
V_KD = 44
V_VD = 30
V_IDX = 29
V_QO = 28
V_OO = 27
V_L = 8
V_ST0 = 25; V_ST1 = 26
A_Q = 0
A_K = 64
A_V = 96
A_L = 128
A_ONE = 144
S_Q = 12; S_K = 16; S_V = 20; S_O = 24
S_MK = 28; S_MV = 32
S_OFF = 36
S_CNT = 37
S_W = 38
S_4K = 40
S_C = 44
S_T = 46
S_WS = 60
S_STN = 64

def vr(b, n=1): return f"v{b}" if n == 1 else f"v[{b}:{b+n-1}]"
def ar(b, n=1): return f"a{b}" if n == 1 else f"a[{b}:{b+n-1}]"
def sr(b, n=1): return f"s{b}" if n == 1 else f"s[{b}:{b+n-1}]"
def O(qb, t): return V_O + 32 * qb + 4 * t
def S(qb, kb): return V_S + 8 * qb + 4 * kb
def P(qb, par): return V_P + 8 * qb + 4 * par

def mfma_qk(qb, kb, c, czero=False):
    d = vr(S(qb, kb), 4)
    cc = d if c else ("0" if czero else vr(V_NM + 4 * qb, 4))
    return f"v_mfma_f32_16x16x32_bf16 {d}, {ar(A_K + 4*(kb*4+c), 4)}, {ar(A_Q + 16*qb + 4*c, 4)}, {cc}"
def mfma_pv(qb, t, par):
    d = vr(O(qb, t), 4)
    return f"v_mfma_f32_16x16x32_bf16 {d}, {ar(A_V + 4*t, 4)}, {vr(P(qb, par), 4)}, {d}"
def smf(qb):
    return f"v_smfmac_f32_16x16x64_bf16 {ar(A_L + 4*qb, 4)}, {ar(A_ONE, 4)}, {vr(P(qb, 0), 8)}, {vr(V_IDX)}"
def sreg(e): return V_S + e
def exp_i(e, o): return f"v_exp_f32_e{'64' if o.exp64 else '32'} {vr(sreg(e))}, {vr(sreg(e))}"
def cvt_i(e, par):
    return f"v_cvt_pk_bf16_f32 {vr(P(e // 8, par) + (e % 8) // 2)}, {vr(sreg(e-1))}, {vr(sreg(e))}"
def kread(st, kb16, kb, c): return f"ds_read_b128 {ar(A_K + 4*(kb*4+c), 4)}, {vr(V_KR + c)} offset:{st*16384 + kb16*4096}"
def vread(st, half, t, pp): return f"ds_read_b64_tr_b16 {ar(A_V + 4*t + 2*pp, 2)}, {vr(V_VR + t)} offset:{st*16384 + (32*half + 16*pp)*256}"
def kdma(j): return f"buffer_load_dwordx4 {vr(V_KD + j)}, {sr(S_K, 4)}, {sr(S_OFF)} offen offset:{1024*j} lds"
def vdma(j): return f"buffer_load_dwordx4 {vr(V_VD + j % 2)}, {sr(S_V, 4)}, {sr(S_OFF)} offen offset:{1024*j} lds"

def stamp(o, out):
    if not o.stamps: return
    out += ["s_memrealtime s[66:67]", "s_memtime s[68:69]", "s_waitcnt lgkmcnt(0)",
            "s_mov_b32 s70, m0", f"s_mov_b32 m0, {sr(S_STN)}",
            f"v_writelane_b32 {vr(V_ST0)}, s66, m0", f"v_writelane_b32 {vr(V_ST1)}, s68, m0", "s_mov_b32 m0, s70",
            f"s_add_u32 {sr(S_STN)}, {sr(S_STN)}, 1"]

EXP0 = 9

def is4(t):
    op = t.split()[0]
    if op in ("s_waitcnt", "s_barrier", "s_nop", "s_cbranch_scc1", "s_cbranch_scc0", "s_branch"): return True
    if op.endswith("_e32"): return True
    if op.startswith("s_"):
        return not any(x.strip().startswith("0x") or (x.strip().lstrip('-').isdigit() and not -16 <= int(x) <= 64) for x in t[len(op):].split(","))
    return False

def step(o, par, st, last_in_body):
    mf = [mfma_qk(s // 8, (s % 8) // 4, s % 4) for s in range(32)]
    pv = [mfma_pv(s // 8, s % 8, par) for s in range(32)]
    if par == 0:
        mf += pv[:8] + [smf(0)] + pv[8:16] + [smf(1)] + pv[16:]
    else:
        mf += [smf(2)] + pv[:8] + [smf(3)] + pv[8:]
    n = len(mf)
    fill = [[] for _ in range(n)]
    cv = [[] for _ in range(n)]
    for e in range(32):
        g = EXP0 + 2 * e
        p = 1 - par
        if g >= n:
            g = g - n; p = par
        fill[g].append(exp_i(e, o))
        if e % 2 == 1: cv[(g + 1)].append(cvt_i(e, p))
    free = [g for g in range(n) if not fill[g]]
    vg = [0, 0, 2, 4, 4, 6, 7, 8, 10, 12, 14, 16, 18, 20, 22, 24]
    for k, g in enumerate(vg): fill[g].append(vread(st, par, k // 2, k % 2))
    kg = [34, 36, 38, 40, 42, 44, 46, 48]
    for k, g in enumerate(kg): fill[g].append(kread(st, 2 * par + k // 4, k // 4, k % 4))
    dst = (st + 2) % 4
    fill[46].append(f"s_mov_b32 m0, {sr((S_MK if par == 0 else S_MV) + dst)}")
    for j, g in enumerate([50, 52, 54, 56]): fill[g].append(kdma(j) if par == 0 else vdma(j))
    for g in range(n): fill[g] += cv[g]
    fill[30].append("s_waitcnt lgkmcnt(0)")
    if par == 0:
        fill[62].append("s_waitcnt lgkmcnt(0)")
    else:
        fill[58].append(f"s_add_u32 {sr(S_OFF)}, {sr(S_OFF)}, 0x4000")
        fill[62] += ["s_waitcnt vmcnt(8) lgkmcnt(0)", "s_barrier"]
        if last_in_body:
            fill[26] += [f"s_add_u32 {sr(S_CNT)}, {sr(S_CNT)}, 1", f"s_cmp_lt_u32 {sr(S_CNT)}, {32 // o.unroll}"]
            fill[26] = fill[26][:-1]
            fill[58].append(f"s_cmp_lt_u32 {sr(S_CNT)}, {32 // o.unroll}")
    out = []
    for g in range(n):
        out.append(mf[g])
        f = list(fill[g])
        if o.pad4 and sum(is4(t) for t in f) % 2 == 1:
            f.append("s_nop 0")
        out += f
    return out

def prologue(o):
    L = []
    A = L.append
    A("s_cmp_ge_u32 s2, 0x100")
    A("s_cbranch_scc1 L_end")
    A("s_load_dwordx4 s[4:7], s[0:1], 0")
    A("s_load_dwordx4 s[8:11], s[0:1], 16")
    if o.stamps:
        A("s_load_dwordx2 s[60:61], s[0:1], 40")
        A(f"s_mov_b32 {sr(S_STN)}, 0")
        A(f"v_mov_b32 {vr(V_ST0)}, 0"); A(f"v_mov_b32 {vr(V_ST1)}, 0")
        stamp(o, L)
    A("v_and_b32 v1, 15, v0")
    A("v_bfe_u32 v2, v0, 4, 2")
    A("v_lshrrev_b32 v3, 6, v0")
    A("v_xor_b32 v4, v1, v2")
    A(f"v_readfirstlane_b32 {sr(S_W)}, v3")
    A("v_lshlrev_b32 v5, 12, v3")
    A("v_lshl_add_u32 v5, v2, 8, v5")
    A(f"v_lshl_add_u32 {vr(V_KD)}, v4, 4, v5")
    for j in range(1, 4): A(f"v_xor_b32 {vr(V_KD + j)}, {j << 6}, {vr(V_KD)}")
    A("v_lshlrev_b32 v6, 14, v3")
    A("v_lshl_add_u32 v6, v1, 8, v6")
    A(f"v_lshl_add_u32 {vr(V_QO)}, v2, 4, v6")
    A("v_and_b32 v7, 1, v2")
    A("v_lshl_add_u32 v6, v7, 5, v6")
    A("v_lshrrev_b32 v7, 1, v2")
    A(f"v_lshl_add_u32 {vr(V_OO)}, v7, 4, v6")
    A("v_lshrrev_b32 v6, 1, v1")
    A("v_xor_b32 v6, v6, v2")
    A("v_lshl_add_u32 v6, v6, 5, v5")
    A("v_and_b32 v7, 1, v1")
    A(f"v_lshl_add_u32 {vr(V_VD)}, v7, 4, v6")
    A(f"v_xor_b32 {vr(V_VD + 1)}, 0x80, {vr(V_VD)}")
    A("s_and_b32 s46, s2, 7")
    A("s_lshr_b32 s47, s2, 3")
    A("s_lshl_b32 s48, s46, 21")
    A("s_lshl_b32 s47, s47, 16")
    A("s_add_u32 s48, s48, s47")
    A("s_lshl_b32 s46, s46, 19")
    A(f"s_lshl_b32 s49, {sr(S_W)}, 12")
    for s in range(4):
        A(f"s_add_u32 {sr(S_MK + s)}, s49, {hex(s * 16384)}")
        A(f"s_add_u32 {sr(S_MV + s)}, s49, {hex(65536 + s * 16384)}")
    A(f"s_mov_b32 {sr(S_4K)}, 0")
    for k in range(1, 4): A(f"s_mov_b32 {sr(S_4K + k)}, {hex(4096 * k)}")
    A(f"s_mov_b32 {sr(S_OFF)}, 0")
    A(f"s_mov_b32 m0, {sr(S_MK + 3)}")
    A(f"s_mov_b32 {sr(S_K + 2)}, 0x80000")
    A(f"s_mov_b32 {sr(S_K + 3)}, 0x20000")
    A(f"s_mov_b32 {sr(S_Q + 2)}, 0x10000")
    A(f"s_mov_b32 {sr(S_Q + 3)}, 0x20000")
    A(f"s_mov_b32 {sr(S_V + 2)}, 0x84000")
    A(f"s_mov_b32 {sr(S_V + 3)}, 0x20000")
    A(f"s_mov_b32 {sr(S_O + 2)}, 0x10000")
    A(f"s_mov_b32 {sr(S_O + 3)}, 0x20000")
    A("s_waitcnt lgkmcnt(0)")
    A(f"s_add_u32 {sr(S_K)}, s6, s46")
    A(f"s_addc_u32 {sr(S_K + 1)}, s7, 0")
    A(f"s_add_u32 {sr(S_Q)}, s4, s48")
    A(f"s_addc_u32 {sr(S_Q + 1)}, s5, 0")
    for j in range(4): A(kdma(j))
    for qb in range(4):
        for c in range(4):
            A(f"buffer_load_dwordx4 {vr(V_O + 16*qb + 4*c, 4)}, {vr(V_QO)}, {sr(S_Q, 4)}, {sr(S_4K + qb)} offen offset:{64*c}")
    A("s_sub_u32 s50, s8, 0x4000")
    A("s_subb_u32 s51, s9, 0")
    A(f"s_add_u32 {sr(S_V)}, s50, s46")
    A(f"s_addc_u32 {sr(S_V + 1)}, s51, 0")
    A(f"s_add_u32 {sr(S_O)}, s10, s48")
    A(f"s_addc_u32 {sr(S_O + 1)}, s11, 0")
    for st in range(2):
        A(f"s_add_u32 {sr(S_OFF)}, {sr(S_OFF)}, 0x4000")
        A(f"s_mov_b32 m0, {sr(S_MV + st)}")
        A("s_nop 0")
        for j in range(4): A(vdma(j))
        A(f"s_mov_b32 m0, {sr(S_MK + st)}")
        A("s_nop 0")
        for j in range(4): A(kdma(j))
    A(f"s_add_u32 {sr(S_OFF)}, {sr(S_OFF)}, 0x4000")
    stamp(o, L)
    A(f"v_lshlrev_b32 v5, 8, v1")
    A(f"v_lshl_add_u32 {vr(V_KR)}, v4, 4, v5")
    for c in range(1, 4): A(f"v_xor_b32 {vr(V_KR + c)}, {c << 6}, {vr(V_KR)}")
    A("v_lshrrev_b32 v5, 2, v1")
    A("v_lshl_add_u32 v6, v2, 2, v5")
    A("v_and_b32 v7, 7, v6")
    A("v_lshlrev_b32 v6, 8, v6")
    A("v_lshl_add_u32 v6, v7, 5, v6")
    A("v_and_b32 v7, 3, v1")
    A("v_lshl_add_u32 v6, v7, 3, v6")
    A(f"v_add_u32 {vr(V_VR)}, 0x10000, v6")
    for t in range(1, 8): A(f"v_xor_b32 {vr(V_VR + t)}, {t << 5}, {vr(V_VR)}")
    A("v_and_b32 v5, 1, v0")
    A("v_mov_b32 v6, 0x44444444")
    A("v_mov_b32 v7, 0xeeeeeeee")
    A("v_cmp_eq_u32 vcc, 1, v5")
    A("v_mov_b32 v5, 0x3f803f80")
    for k in range(4): A(f"v_accvgpr_write_b32 {ar(A_ONE + k)}, v5")
    A(f"v_cndmask_b32 {vr(V_IDX)}, v6, v7, vcc")
    for k in range(16): A(f"v_accvgpr_write_b32 {ar(A_L + k)}, 0")
    for k in range(64, 128, 2): A(f"v_mov_b64 {vr(V_O + k, 2)}, 0")
    cbits = 0x3e029413
    import struct
    cval = math.log2(math.e) / math.sqrt(128.0)
    cbits = struct.unpack("<I", struct.pack("<f", cval))[0]
    A(f"s_mov_b32 {sr(S_C)}, {hex(cbits)}")
    A(f"s_mov_b32 {sr(S_C + 1)}, {hex(cbits)}")
    A(f"s_mov_b32 {sr(S_CNT)}, 0")
    A("s_waitcnt vmcnt(32)")
    A("s_barrier")
    for k in range(8): A(kread(3, k // 4, k // 4, k % 4))
    stamp(o, L)
    def softmax0(qb):
        s = S(qb, 0)
        A(f"v_max3_f32 v4, {vr(s)}, {vr(s+1)}, {vr(s+2)}")
        A(f"v_max3_f32 v5, {vr(s+3)}, {vr(s+4)}, {vr(s+5)}")
        A(f"v_max3_f32 v4, v4, {vr(s+6)}, {vr(s+7)}")
        A("v_max_f32 v4, v4, v5")
        A("v_mov_b32 v5, v4")
        A("s_nop 1")
        A("v_permlane32_swap_b32 v4, v5")
        A("v_max_f32 v4, v4, v5")
        A("v_mov_b32 v5, v4")
        A("s_nop 1")
        A("v_permlane16_swap_b32 v4, v5")
        A("v_max_f32 v4, v4, v5")
        for k in range(4): A(f"v_sub_f32 {vr(V_NM + 4*qb + k)}, 0, v4")
        nlast = 32 - (EXP0 + 64 - 66 + 1) // 2 - 0
        for k in range(8): A(f"v_sub_f32 {vr(s + k)}, {vr(s + k)}, v4")
        for k in range(8):
            e = 8 * qb + k
            if EXP0 + 2 * e < 66: A(exp_i(e, o))
        A("s_nop 0")
        for k in range(1, 8, 2):
            e = 8 * qb + k
            if EXP0 + 2 * e < 66: A(cvt_i(e, 0))
    for qb in range(4):
        A(f"s_waitcnt vmcnt({16 + 4 * (3 - qb)})")
        for k in range(16):
            r = V_O + 16 * qb + k
            t = 12 + 2 * (k % 4)
            A(f"v_lshlrev_b32 {vr(t)}, 16, {vr(r)}")
            A(f"v_and_b32 {vr(t + 1)}, 0xffff0000, {vr(r)}")
            A(f"v_pk_mul_f32 {vr(t, 2)}, {vr(t, 2)}, {sr(S_C, 2)}")
            A(f"v_cvt_pk_bf16_f32 {vr(t)}, {vr(t)}, {vr(t + 1)}")
            A(f"v_accvgpr_write_b32 {ar(A_Q + 16*qb + k)}, {vr(t)}")
        if qb == 0: A("s_waitcnt lgkmcnt(0)")
        A("s_nop 0")
        for kb in range(2):
            for c in range(4): A(mfma_qk(qb, kb, c, czero=True))
        if qb == 3:
            for k in range(8): A(kread(3, 2 + k // 4, k // 4, k % 4))
        for k in range(0, 16, 2): A(f"v_mov_b64 {vr(V_O + 16*qb + k, 2)}, 0")
        softmax0(qb)
    A("s_waitcnt vmcnt(8) lgkmcnt(0)")
    A("s_barrier")
    stamp(o, L)
    return L

def epilogue(o):
    L = []; A = L.append
    stamp(o, L)
    A("s_nop 7")
    for qb in range(4):
        A(f"v_accvgpr_read_b32 {vr(V_L + qb)}, {ar(A_L + 4*qb)}")
        A(f"v_accvgpr_read_b32 {vr(12 + qb)}, {ar(A_L + 4*qb + 1)}")
    for qb in range(4): A(f"v_add_f32 {vr(V_L + qb)}, {vr(V_L + qb)}, {vr(12 + qb)}")
    A(f"v_add_f32 v5, {vr(V_L)}, {vr(V_L+1)}")
    A(f"v_add_f32 v6, {vr(V_L+2)}, {vr(V_L+3)}")
    A("v_add_f32 v5, v5, v6")
    A(f"s_mov_b32 s46, {hex(o.thr)}")
    A("v_cmp_nle_f32 vcc, v5, s46" if False else "v_cmp_nge_f32 vcc, s46, v5")
    A("s_nop 4")
    if o.force_slow: A("s_branch L_slow")
    else: A("s_cbranch_vccnz L_slow")
    A("L_store:")
    for qb in range(4): A(f"v_rcp_f32 {vr(V_L + qb)}, {vr(V_L + qb)}")
    for qb in range(4):
        A(f"v_mov_b32 v12, {vr(V_L + qb)}")
        A(f"v_mov_b32 v13, {vr(V_L + qb)}")
        for u in range(4):
            b = O(qb, 2 * u)
            for k in range(0, 8, 2): A(f"v_pk_mul_f32 {vr(b + k, 2)}, {vr(b + k, 2)}, v[12:13]")
            for k in range(4): A(f"v_cvt_pk_bf16_f32 {vr(b + k)}, {vr(b + 2*k)}, {vr(b + 2*k + 1)}")
        for u in range(4):
            b = O(qb, 2 * u)
            A(f"v_permlane16_swap_b32 {vr(b)}, {vr(b + 2)}")
            A(f"v_permlane16_swap_b32 {vr(b + 1)}, {vr(b + 3)}")
        for u in range(4):
            b = O(qb, 2 * u)
            A(f"buffer_store_dwordx4 {vr(b, 4)}, {vr(V_OO)}, {sr(S_O, 4)}, {sr(S_4K + qb)} offen offset:{64*u}")
    if o.stamps:
        stamp(o, L)
        A("s_waitcnt vmcnt(0)")
        stamp(o, L)
        A("s_mov_b32 s62, 0x10000000"); A("s_mov_b32 s63, 0x20000")
        A("v_lshlrev_b32 v4, 3, v0"); A("s_lshl_b32 s3, s2, 11"); A("v_add_u32 v4, s3, v4")
        A(f"v_mov_b32 v6, {vr(V_ST0)}"); A(f"v_mov_b32 v7, {vr(V_ST1)}")
        A("buffer_store_dwordx2 v[6:7], v4, s[60:63], 0 offen")
    A("L_end:")
    A("s_endpgm")
    return L

def slowpath(o):
    L = []; A = L.append
    VM = 48
    A("L_slow:")
    A("s_waitcnt vmcnt(0) lgkmcnt(0)")
    A("v_lshlrev_b32 v14, 8, v1")
    A("v_lshl_add_u32 v14, v2, 4, v14")
    A(f"s_lshl_b32 s46, {sr(S_W)}, 12")
    A(f"v_subrev_u32 v15, s46, {vr(V_VD)}")
    A(f"v_subrev_u32 v16, s46, {vr(V_VD + 1)}")
    A(f"s_lshl_b32 s47, {sr(S_W)}, 13")
    A("s_add_u32 s47, s47, 0x20000")
    A("s_sub_u32 s48, s47, 0x10000")
    for t in range(8): A(f"v_add_u32 {vr(V_VR + t)}, s48, {vr(V_VR + t)}")
    A("s_add_u32 s48, s47, 0x1000")
    for k in range(0, 128, 2): A(f"v_mov_b64 {vr(V_O + k, 2)}, 0")
    for qb in range(4):
        A(f"v_mov_b32 {vr(VM + qb)}, 0xff800000")
        A(f"v_mov_b32 {vr(V_L + qb)}, 0")
    A("s_mov_b32 s50, 0")
    A("L_slow_loop:")
    A("s_add_u32 s51, s50, 0x1000")
    A("s_add_u32 s52, s50, 0x4000")
    A("s_add_u32 s53, s50, 0x5000")
    for kb in range(2):
        for c in range(4):
            A(f"buffer_load_dwordx4 {ar(A_K + 4*(kb*4+c), 4)}, v14, {sr(S_K, 4)}, s{50 + kb} offen offset:{64*c}")
    for h in range(2):
        A(f"s_mov_b32 m0, s{47 + h}")
        A("s_nop 0")
        for j in range(4):
            A(f"buffer_load_dwordx4 v{15 + j % 2}, {sr(S_V, 4)}, s{52 + h} offen offset:{1024*j} lds")
    A("s_waitcnt vmcnt(0)")
    for t in range(8):
        for pp in range(2): A(vread(0, 0, t, pp))
    for qb in range(4):
        for kb in range(2):
            for c in range(4): A(mfma_qk(qb, kb, c, czero=True))
    A("s_nop 7")
    for qb in range(4):
        s = S(qb, 0)
        A(f"v_max3_f32 v4, {vr(s)}, {vr(s+1)}, {vr(s+2)}")
        A(f"v_max3_f32 v5, {vr(s+3)}, {vr(s+4)}, {vr(s+5)}")
        A(f"v_max3_f32 v4, v4, {vr(s+6)}, {vr(s+7)}")
        A(f"v_max3_f32 v4, v4, v5, {vr(VM + qb)}")
        A("v_mov_b32 v5, v4")
        A("s_nop 1")
        A("v_permlane32_swap_b32 v4, v5")
        A("v_max_f32 v4, v4, v5")
        A("v_mov_b32 v5, v4")
        A("s_nop 1")
        A("v_permlane16_swap_b32 v4, v5")
        A("v_max_f32 v4, v4, v5")
        A(f"v_sub_f32 v6, {vr(VM + qb)}, v4")
        A("v_exp_f32 v6, v6")
        A(f"v_mov_b32 {vr(VM + qb)}, v4")
        for k in range(8): A(f"v_sub_f32 {vr(s + k)}, {vr(s + k)}, v4")
        for k in range(8): A(f"v_exp_f32 {vr(s + k)}, {vr(s + k)}")
        A(f"v_mul_f32 {vr(V_L + qb)}, {vr(V_L + qb)}, v6")
        for k in range(8): A(f"v_add_f32 {vr(V_L + qb)}, {vr(V_L + qb)}, {vr(s + k)}")
        for k in range(1, 8, 2): A(cvt_i(8 * qb + k, 0))
        for k in range(32): A(f"v_mul_f32 {vr(V_O + 32*qb + k)}, {vr(V_O + 32*qb + k)}, v6")
    A("s_waitcnt lgkmcnt(0)")
    A("s_nop 1")
    for qb in range(4):
        for t in range(8): A(mfma_pv(qb, t, 0))
    A("s_add_u32 s50, s50, 0x2000")
    A("s_cmp_lt_u32 s50, 0x80000")
    A("s_nop 7")
    A("s_cbranch_scc1 L_slow_loop")
    for qb in range(4):
        l = vr(V_L + qb)
        A(f"v_mov_b32 v5, {l}")
        A("s_nop 1")
        A(f"v_permlane32_swap_b32 {l}, v5")
        A(f"v_add_f32 {l}, {l}, v5")
        A(f"v_mov_b32 v5, {l}")
        A("s_nop 1")
        A(f"v_permlane16_swap_b32 {l}, v5")
        A(f"v_add_f32 {l}, {l}, v5")
    A("s_branch L_store")
    return L

def build(o):
    pro = prologue(o)
    body = []
    for u in range(o.unroll):
        body += step(o, 0, u % 4, False)
        body += step(o, 1, u % 4, u == o.unroll - 1)
    tail = []
    if o.stamps:
        stamp(o, tail)
        tail.append(f"s_cmp_lt_u32 {sr(S_CNT)}, {32 // o.unroll}")
    tail.append("s_cbranch_scc1 L_loop")
    epi = epilogue(o)
    slow = slowpath(o)
    ex = [I(t) for t in pro + body + tail + body + tail + epi]
    e1 = check(ex, "main")
    i0 = slow.index("L_slow_loop:"); i1 = slow.index("s_cbranch_scc1 L_slow_loop")
    ie = epi.index("L_store:")
    ex = [I(t) for t in body + tail + epi[:ie] + slow[:i1 + 1] + slow[i0:] + epi[ie:]]
    e2 = check(ex, "slow")
    lines = pro + [f".p2align {o.align}", "L_loop:"] + body + tail + epi + slow
    txt = "\n".join(("" if t.endswith(":") or t.startswith(".") else "  ") + t for t in lines)
    return wrap(txt, grid=256, block=256, lds=163840, vgpr=512, accum=256, sgpr=96), (e1 or e2)

if __name__ == "__main__":
    ap = argparse.ArgumentParser()
    ap.add_argument("-o", default="k.s")
    ap.add_argument("set", nargs="*")
    a = ap.parse_args()
    o = Opt()
    for kv in a.set:
        k, v = kv.split("=")
        assert hasattr(o, k), k
        setattr(o, k, type(getattr(o, k))(int(v, 0)))
    txt, err = build(o)
    open(a.o, "w").write(txt)
    print("wrote", a.o, "errors" if err else "clean")
```

```python
import sys, argparse, math
sys.path.insert(0, "work")
from common import wrap
from asmlib import I, check

class Opt:
    stamps = 0
    exp64 = True
    unroll = 4
    force_slow = False
    thr = 0x53800000
    l2pf = False
    pad4 = True
    align = 3
    rep = 1
    stflags = 1

V_O = 128
V_S = 96
V_P = 64
V_NM = 48
V_KR = 32
V_VR = 36
V_KD = 44
V_VD = 30
V_IDX = 29
V_QO = 28
V_OO = 27
V_L = 8
V_ST0 = 25; V_ST1 = 26
A_Q = 0
A_K = 64
A_V = 96
A_L = 128
A_ONE = 144
S_Q = 12; S_K = 16; S_V = 20; S_O = 24
S_MK = 28; S_MV = 32
S_OFF = 36
S_CNT = 37
S_W = 38
S_4K = 40
S_C = 44
S_T = 46
S_WS = 60
S_STN = 64

def vr(b, n=1): return f"v{b}" if n == 1 else f"v[{b}:{b+n-1}]"
def ar(b, n=1): return f"a{b}" if n == 1 else f"a[{b}:{b+n-1}]"
def sr(b, n=1): return f"s{b}" if n == 1 else f"s[{b}:{b+n-1}]"
def O(qb, t): return V_O + 32 * qb + 4 * t
def S(qb, kb): return V_S + 8 * qb + 4 * kb
def P(qb, par): return V_P + 8 * qb + 4 * par

def mfma_qk(qb, kb, c, czero=False):
    d = vr(S(qb, kb), 4)
    cc = d if c else ("0" if czero else vr(V_NM + 4 * qb, 4))
    return f"v_mfma_f32_16x16x32_bf16 {d}, {ar(A_K + 4*(kb*4+c), 4)}, {ar(A_Q + 16*qb + 4*c, 4)}, {cc}"
def mfma_pv(qb, t, par):
    d = vr(O(qb, t), 4)
    return f"v_mfma_f32_16x16x32_bf16 {d}, {ar(A_V + 4*t, 4)}, {vr(P(qb, par), 4)}, {d}"
def smf(qb):
    return f"v_smfmac_f32_16x16x64_bf16 {ar(A_L + 4*qb, 4)}, {ar(A_ONE, 4)}, {vr(P(qb, 0), 8)}, {vr(V_IDX)}"
def sreg(e): return V_S + e
def exp_i(e, o): return f"v_exp_f32_e{'64' if o.exp64 else '32'} {vr(sreg(e))}, {vr(sreg(e))}"
def cvt_i(e, par):
    return f"v_cvt_pk_bf16_f32 {vr(P(e // 8, par) + (e % 8) // 2)}, {vr(sreg(e-1))}, {vr(sreg(e))}"
def kread(st, kb16, kb, c): return f"ds_read_b128 {ar(A_K + 4*(kb*4+c), 4)}, {vr(V_KR + c)} offset:{st*16384 + kb16*4096}"
def vread(st, half, t, pp): return f"ds_read_b64_tr_b16 {ar(A_V + 4*t + 2*pp, 2)}, {vr(V_VR + t)} offset:{st*16384 + (32*half + 16*pp)*256}"
def kdma(j, so=None): return f"buffer_load_dwordx4 {vr(V_KD + j)}, {sr(S_K, 4)}, {sr(S_OFF if so is None else so)} offen offset:{1024*j} lds"
def vdma(j): return f"buffer_load_dwordx4 {vr(V_VD + j % 2)}, {sr(S_V, 4)}, {sr(S_OFF)} offen offset:{1024*j} lds"

def stamp(o, out):
    if not o.stamps: return
    out += ["s_memrealtime s[66:67]", "s_memtime s[68:69]", "s_waitcnt lgkmcnt(0)",
            "s_mov_b32 s70, m0", f"s_mov_b32 m0, {sr(S_STN)}",
            f"v_writelane_b32 {vr(V_ST0)}, s66, m0", f"v_writelane_b32 {vr(V_ST1)}, s68, m0", "s_mov_b32 m0, s70",
            f"s_add_u32 {sr(S_STN)}, {sr(S_STN)}, 1"]

EXP0 = 9

def is4(t):
    op = t.split()[0]
    if op in ("s_waitcnt", "s_barrier", "s_nop", "s_cbranch_scc1", "s_cbranch_scc0", "s_branch"): return True
    if op.endswith("_e32"): return True
    if op.startswith("s_"):
        return not any(x.strip().startswith("0x") or (x.strip().lstrip('-').isdigit() and not -16 <= int(x) <= 64) for x in t[len(op):].split(","))
    return False

def step(o, par, st, last_in_body):
    mf = [mfma_qk(s // 8, (s % 8) // 4, s % 4) for s in range(32)]
    pv = [mfma_pv(s // 8, s % 8, par) for s in range(32)]
    if par == 0:
        mf += pv[:8] + [smf(0)] + pv[8:16] + [smf(1)] + pv[16:]
    else:
        mf += [smf(2)] + pv[:8] + [smf(3)] + pv[8:]
    n = len(mf)
    fill = [[] for _ in range(n)]
    cv = [[] for _ in range(n)]
    for e in range(32):
        g = EXP0 + 2 * e
        p = 1 - par
        if g >= n:
            g = g - n; p = par
        fill[g].append(exp_i(e, o))
        if e % 2 == 1: cv[(g + 1)].append(cvt_i(e, p))
    free = [g for g in range(n) if not fill[g]]
    vg = [0, 0, 2, 4, 4, 6, 7, 8, 10, 12, 14, 16, 18, 20, 22, 24]
    for k, g in enumerate(vg): fill[g].append(vread(st, par, k // 2, k % 2))
    kg = [34, 36, 38, 40, 42, 44, 46, 48]
    for k, g in enumerate(kg): fill[g].append(kread(st, 2 * par + k // 4, k // 4, k % 4))
    dst = (st + 2) % 4
    fill[46].append(f"s_mov_b32 m0, {sr((S_MK if par == 0 else S_MV) + dst)}")
    for j, g in enumerate([50, 52, 54, 56]): fill[g].append(kdma(j, 39 if o.rep > 1 else None) if par == 0 else vdma(j))
    if o.rep > 1 and par == 0:
        fill[42].append(f"s_and_b32 s39, {sr(S_OFF)}, 0x7ffff")
    if o.rep > 1 and par == 1:
        fill[14] += [f"s_cmp_eq_u32 {sr(S_OFF)}, 0x84000"]
        fill[18] += [f"s_cselect_b32 {sr(S_OFF)}, 0x4000, {sr(S_OFF)}"]
    for g in range(n): fill[g] += cv[g]
    fill[30].append("s_waitcnt lgkmcnt(0)")
    if par == 0:
        fill[62].append("s_waitcnt lgkmcnt(0)")
    else:
        fill[58].append(f"s_add_u32 {sr(S_OFF)}, {sr(S_OFF)}, 0x4000")
        fill[62] += ["s_waitcnt vmcnt(8) lgkmcnt(0)", "s_barrier"]
        if last_in_body:
            fill[26] += [f"s_add_u32 {sr(S_CNT)}, {sr(S_CNT)}, 1", f"s_cmp_lt_u32 {sr(S_CNT)}, {o.rep * 32 // o.unroll}"]
            fill[26] = fill[26][:-1]
            fill[58].append(f"s_cmp_lt_u32 {sr(S_CNT)}, {o.rep * 32 // o.unroll}")
    out = []
    for g in range(n):
        out.append(mf[g])
        f = list(fill[g])
        if o.pad4 and sum(is4(t) for t in f) % 2 == 1:
            f.append("s_nop 0")
        out += f
    return out

def prologue(o):
    L = []
    A = L.append
    A("s_cmp_ge_u32 s2, 0x100")
    A("s_cbranch_scc1 L_end")
    if o.stamps:
        A(f"s_mov_b32 {sr(S_STN)}, 0")
        A(f"v_mov_b32 {vr(V_ST0)}, 0"); A(f"v_mov_b32 {vr(V_ST1)}, 0")
        stamp(o, L)
        A("s_load_dwordx2 s[60:61], s[0:1], 40")
    A("s_load_dwordx4 s[4:7], s[0:1], 0")
    A("s_load_dwordx4 s[8:11], s[0:1], 16")
    if o.stamps > 1: stamp(o, L)
    A("v_and_b32 v1, 15, v0")
    A("v_bfe_u32 v2, v0, 4, 2")
    A("v_lshrrev_b32 v3, 6, v0")
    A("v_xor_b32 v4, v1, v2")
    A(f"v_readfirstlane_b32 {sr(S_W)}, v3")
    A("v_lshlrev_b32 v5, 12, v3")
    A("v_lshl_add_u32 v5, v2, 8, v5")
    A(f"v_lshl_add_u32 {vr(V_KD)}, v4, 4, v5")
    for j in range(1, 4): A(f"v_xor_b32 {vr(V_KD + j)}, {j << 6}, {vr(V_KD)}")
    A("v_lshlrev_b32 v6, 14, v3")
    A("v_lshl_add_u32 v6, v1, 8, v6")
    A(f"v_lshl_add_u32 {vr(V_QO)}, v2, 4, v6")
    A("v_and_b32 v7, 1, v2")
    A("v_lshl_add_u32 v6, v7, 5, v6")
    A("v_lshrrev_b32 v7, 1, v2")
    A(f"v_lshl_add_u32 {vr(V_OO)}, v7, 4, v6")
    A("v_lshrrev_b32 v6, 1, v1")
    A("v_xor_b32 v6, v6, v2")
    A("v_lshl_add_u32 v6, v6, 5, v5")
    A("v_and_b32 v7, 1, v1")
    A(f"v_lshl_add_u32 {vr(V_VD)}, v7, 4, v6")
    A(f"v_xor_b32 {vr(V_VD + 1)}, 0x80, {vr(V_VD)}")
    A("s_and_b32 s46, s2, 7")
    A("s_lshr_b32 s47, s2, 3")
    A("s_lshl_b32 s48, s46, 21")
    A("s_lshl_b32 s47, s47, 16")
    A("s_add_u32 s48, s48, s47")
    A("s_lshl_b32 s46, s46, 19")
    A(f"s_lshl_b32 s49, {sr(S_W)}, 12")
    for s in range(4):
        A(f"s_add_u32 {sr(S_MK + s)}, s49, {hex(s * 16384)}")
        A(f"s_add_u32 {sr(S_MV + s)}, s49, {hex(65536 + s * 16384)}")
    A(f"s_mov_b32 {sr(S_4K)}, 0")
    for k in range(1, 4): A(f"s_mov_b32 {sr(S_4K + k)}, {hex(4096 * k)}")
    A(f"s_mov_b32 {sr(S_OFF)}, 0")
    A(f"s_mov_b32 m0, {sr(S_MK + 3)}")
    A(f"s_mov_b32 {sr(S_K + 2)}, 0x80000")
    A(f"s_mov_b32 {sr(S_K + 3)}, 0x20000")
    A(f"s_mov_b32 {sr(S_Q + 2)}, 0x10000")
    A(f"s_mov_b32 {sr(S_Q + 3)}, 0x20000")
    A(f"s_mov_b32 {sr(S_V + 2)}, 0x84000")
    A(f"s_mov_b32 {sr(S_V + 3)}, 0x20000")
    A(f"s_mov_b32 {sr(S_O + 2)}, 0x10000")
    A(f"s_mov_b32 {sr(S_O + 3)}, 0x20000")
    A("s_waitcnt lgkmcnt(0)")
    if o.stamps > 1: stamp(o, L)
    A(f"s_add_u32 {sr(S_K)}, s6, s46")
    A(f"s_addc_u32 {sr(S_K + 1)}, s7, 0")
    A(f"s_add_u32 {sr(S_Q)}, s4, s48")
    A(f"s_addc_u32 {sr(S_Q + 1)}, s5, 0")
    for j in range(4): A(kdma(j))
    if o.stamps > 1: stamp(o, L)
    for qb in range(4):
        for c in range(4):
            A(f"buffer_load_dwordx4 {vr(V_O + 16*qb + 4*c, 4)}, {vr(V_QO)}, {sr(S_Q, 4)}, {sr(S_4K + qb)} offen offset:{64*c}")
    if o.stamps > 1: stamp(o, L)
    A("s_sub_u32 s50, s8, 0x4000")
    A("s_subb_u32 s51, s9, 0")
    A(f"s_add_u32 {sr(S_V)}, s50, s46")
    A(f"s_addc_u32 {sr(S_V + 1)}, s51, 0")
    A(f"s_add_u32 {sr(S_O)}, s10, s48")
    A(f"s_addc_u32 {sr(S_O + 1)}, s11, 0")
    for st in range(2):
        A(f"s_add_u32 {sr(S_OFF)}, {sr(S_OFF)}, 0x4000")
        A(f"s_mov_b32 m0, {sr(S_MV + st)}")
        A("s_nop 0")
        for j in range(4): A(vdma(j))
        A(f"s_mov_b32 m0, {sr(S_MK + st)}")
        A("s_nop 0")
        for j in range(4): A(kdma(j))
    A(f"s_add_u32 {sr(S_OFF)}, {sr(S_OFF)}, 0x4000")
    stamp(o, L)
    A(f"v_lshlrev_b32 v5, 8, v1")
    A(f"v_lshl_add_u32 {vr(V_KR)}, v4, 4, v5")
    for c in range(1, 4): A(f"v_xor_b32 {vr(V_KR + c)}, {c << 6}, {vr(V_KR)}")
    A("v_lshrrev_b32 v5, 2, v1")
    A("v_lshl_add_u32 v6, v2, 2, v5")
    A("v_and_b32 v7, 7, v6")
    A("v_lshlrev_b32 v6, 8, v6")
    A("v_lshl_add_u32 v6, v7, 5, v6")
    A("v_and_b32 v7, 3, v1")
    A("v_lshl_add_u32 v6, v7, 3, v6")
    A(f"v_add_u32 {vr(V_VR)}, 0x10000, v6")
    for t in range(1, 8): A(f"v_xor_b32 {vr(V_VR + t)}, {t << 5}, {vr(V_VR)}")
    A("v_and_b32 v5, 1, v0")
    A("v_mov_b32 v6, 0x44444444")
    A("v_mov_b32 v7, 0xeeeeeeee")
    A("v_cmp_eq_u32 vcc, 1, v5")
    A("v_mov_b32 v5, 0x3f803f80")
    for k in range(4): A(f"v_accvgpr_write_b32 {ar(A_ONE + k)}, v5")
    A(f"v_cndmask_b32 {vr(V_IDX)}, v6, v7, vcc")
    for k in range(16): A(f"v_accvgpr_write_b32 {ar(A_L + k)}, 0")
    for k in range(64, 128, 2): A(f"v_mov_b64 {vr(V_O + k, 2)}, 0")
    cbits = 0x3e029413
    import struct
    cval = math.log2(math.e) / math.sqrt(128.0)
    cbits = struct.unpack("<I", struct.pack("<f", cval))[0]
    A(f"s_mov_b32 {sr(S_C)}, {hex(cbits)}")
    A(f"s_mov_b32 {sr(S_C + 1)}, {hex(cbits)}")
    A(f"s_mov_b32 {sr(S_CNT)}, 0")
    A("s_waitcnt vmcnt(32)")
    A("s_barrier")
    for k in range(8): A(kread(3, k // 4, k // 4, k % 4))
    stamp(o, L)
    def softmax0(qb):
        s = S(qb, 0)
        A(f"v_max3_f32 v4, {vr(s)}, {vr(s+1)}, {vr(s+2)}")
        A(f"v_max3_f32 v5, {vr(s+3)}, {vr(s+4)}, {vr(s+5)}")
        A(f"v_max3_f32 v4, v4, {vr(s+6)}, {vr(s+7)}")
        A("v_max_f32 v4, v4, v5")
        A("v_mov_b32 v5, v4")
        A("s_nop 1")
        A("v_permlane32_swap_b32 v4, v5")
        A("v_max_f32 v4, v4, v5")
        A("v_mov_b32 v5, v4")
        A("s_nop 1")
        A("v_permlane16_swap_b32 v4, v5")
        A("v_max_f32 v4, v4, v5")
        for k in range(4): A(f"v_sub_f32 {vr(V_NM + 4*qb + k)}, 0, v4")
        nlast = 32 - (EXP0 + 64 - 66 + 1) // 2 - 0
        for k in range(8): A(f"v_sub_f32 {vr(s + k)}, {vr(s + k)}, v4")
        for k in range(8):
            e = 8 * qb + k
            if EXP0 + 2 * e < 66: A(exp_i(e, o))
        A("s_nop 0")
        for k in range(1, 8, 2):
            e = 8 * qb + k
            if EXP0 + 2 * e < 66: A(cvt_i(e, 0))
    for qb in range(4):
        A(f"s_waitcnt vmcnt({16 + 4 * (3 - qb)})")
        if o.stamps > 1: stamp(o, L)
        for k in range(16):
            r = V_O + 16 * qb + k
            t = 12 + 2 * (k % 4)
            A(f"v_lshlrev_b32 {vr(t)}, 16, {vr(r)}")
            A(f"v_and_b32 {vr(t + 1)}, 0xffff0000, {vr(r)}")
            A(f"v_pk_mul_f32 {vr(t, 2)}, {vr(t, 2)}, {sr(S_C, 2)}")
            A(f"v_cvt_pk_bf16_f32 {vr(t)}, {vr(t)}, {vr(t + 1)}")
            A(f"v_accvgpr_write_b32 {ar(A_Q + 16*qb + k)}, {vr(t)}")
        if qb == 0: A("s_waitcnt lgkmcnt(0)")
        A("s_nop 0")
        for kb in range(2):
            for c in range(4): A(mfma_qk(qb, kb, c, czero=True))
        if qb == 3:
            for k in range(8): A(kread(3, 2 + k // 4, k // 4, k % 4))
        for k in range(0, 16, 2): A(f"v_mov_b64 {vr(V_O + 16*qb + k, 2)}, 0")
        softmax0(qb)
    A("s_waitcnt vmcnt(8) lgkmcnt(0)")
    A("s_barrier")
    stamp(o, L)
    return L

def epilogue(o):
    L = []; A = L.append
    stamp(o, L)
    A("s_nop 7")
    for qb in range(4):
        A(f"v_accvgpr_read_b32 {vr(V_L + qb)}, {ar(A_L + 4*qb)}")
        A(f"v_accvgpr_read_b32 {vr(12 + qb)}, {ar(A_L + 4*qb + 1)}")
    for qb in range(4): A(f"v_add_f32 {vr(V_L + qb)}, {vr(V_L + qb)}, {vr(12 + qb)}")
    A(f"v_add_f32 v5, {vr(V_L)}, {vr(V_L+1)}")
    A(f"v_add_f32 v6, {vr(V_L+2)}, {vr(V_L+3)}")
    A("v_add_f32 v5, v5, v6")
    A(f"s_mov_b32 s46, {hex(o.thr)}")
    A("v_cmp_nle_f32 vcc, v5, s46" if False else "v_cmp_nge_f32 vcc, s46, v5")
    A("s_nop 4")
    if o.force_slow: A("s_branch L_slow")
    else: A("s_cbranch_vccnz L_slow")
    A("L_store:")
    for qb in range(4): A(f"v_rcp_f32 {vr(V_L + qb)}, {vr(V_L + qb)}")
    for qb in range(4):
        A(f"v_mov_b32 v12, {vr(V_L + qb)}")
        A(f"v_mov_b32 v13, {vr(V_L + qb)}")
        for u in range(4):
            b = O(qb, 2 * u)
            for k in range(0, 8, 2): A(f"v_pk_mul_f32 {vr(b + k, 2)}, {vr(b + k, 2)}, v[12:13]")
            for k in range(4): A(f"v_cvt_pk_bf16_f32 {vr(b + k)}, {vr(b + 2*k)}, {vr(b + 2*k + 1)}")
        for u in range(4):
            b = O(qb, 2 * u)
            A(f"v_permlane16_swap_b32 {vr(b)}, {vr(b + 2)}")
            A(f"v_permlane16_swap_b32 {vr(b + 1)}, {vr(b + 3)}")
        for u in range(4):
            b = O(qb, 2 * u)
            A(f"buffer_store_dwordx4 {vr(b, 4)}, {vr(V_OO)}, {sr(S_O, 4)}, {sr(S_4K + qb)} offen offset:{64*u}" + ["", " sc0 sc1", " sc1", " nt"][o.stflags])
        if o.stamps > 1 and qb < 3: stamp(o, L)
    if o.stamps:
        stamp(o, L)
        A("s_waitcnt vmcnt(0)")
        stamp(o, L)
        A("s_mov_b32 s62, 0x10000000"); A("s_mov_b32 s63, 0x20000")
        A("v_lshlrev_b32 v4, 3, v0"); A("s_lshl_b32 s3, s2, 11"); A("v_add_u32 v4, s3, v4")
        A(f"v_mov_b32 v6, {vr(V_ST0)}"); A(f"v_mov_b32 v7, {vr(V_ST1)}")
        A("buffer_store_dwordx2 v[6:7], v4, s[60:63], 0 offen")
    A("L_end:")
    A("s_endpgm")
    return L

def slowpath(o):
    L = []; A = L.append
    VM = 48
    A("L_slow:")
    A("s_waitcnt vmcnt(0) lgkmcnt(0)")
    A("v_lshlrev_b32 v14, 8, v1")
    A("v_lshl_add_u32 v14, v2, 4, v14")
    A(f"s_lshl_b32 s46, {sr(S_W)}, 12")
    A(f"v_subrev_u32 v15, s46, {vr(V_VD)}")
    A(f"v_subrev_u32 v16, s46, {vr(V_VD + 1)}")
    A(f"s_lshl_b32 s47, {sr(S_W)}, 13")
    A("s_add_u32 s47, s47, 0x20000")
    A("s_sub_u32 s48, s47, 0x10000")
    for t in range(8): A(f"v_add_u32 {vr(V_VR + t)}, s48, {vr(V_VR + t)}")
    A("s_add_u32 s48, s47, 0x1000")
    for k in range(0, 128, 2): A(f"v_mov_b64 {vr(V_O + k, 2)}, 0")
    for qb in range(4):
        A(f"v_mov_b32 {vr(VM + qb)}, 0xff800000")
        A(f"v_mov_b32 {vr(V_L + qb)}, 0")
    A("s_mov_b32 s50, 0")
    A("L_slow_loop:")
    A("s_add_u32 s51, s50, 0x1000")
    A("s_add_u32 s52, s50, 0x4000")
    A("s_add_u32 s53, s50, 0x5000")
    for kb in range(2):
        for c in range(4):
            A(f"buffer_load_dwordx4 {ar(A_K + 4*(kb*4+c), 4)}, v14, {sr(S_K, 4)}, s{50 + kb} offen offset:{64*c}")
    for h in range(2):
        A(f"s_mov_b32 m0, s{47 + h}")
        A("s_nop 0")
        for j in range(4):
            A(f"buffer_load_dwordx4 v{15 + j % 2}, {sr(S_V, 4)}, s{52 + h} offen offset:{1024*j} lds")
    A("s_waitcnt vmcnt(0)")
    for t in range(8):
        for pp in range(2): A(vread(0, 0, t, pp))
    for qb in range(4):
        for kb in range(2):
            for c in range(4): A(mfma_qk(qb, kb, c, czero=True))
    A("s_nop 7")
    for qb in range(4):
        s = S(qb, 0)
        A(f"v_max3_f32 v4, {vr(s)}, {vr(s+1)}, {vr(s+2)}")
        A(f"v_max3_f32 v5, {vr(s+3)}, {vr(s+4)}, {vr(s+5)}")
        A(f"v_max3_f32 v4, v4, {vr(s+6)}, {vr(s+7)}")
        A(f"v_max3_f32 v4, v4, v5, {vr(VM + qb)}")
        A("v_mov_b32 v5, v4")
        A("s_nop 1")
        A("v_permlane32_swap_b32 v4, v5")
        A("v_max_f32 v4, v4, v5")
        A("v_mov_b32 v5, v4")
        A("s_nop 1")
        A("v_permlane16_swap_b32 v4, v5")
        A("v_max_f32 v4, v4, v5")
        A(f"v_sub_f32 v6, {vr(VM + qb)}, v4")
        A("v_exp_f32 v6, v6")
        A(f"v_mov_b32 {vr(VM + qb)}, v4")
        for k in range(8): A(f"v_sub_f32 {vr(s + k)}, {vr(s + k)}, v4")
        for k in range(8): A(f"v_exp_f32 {vr(s + k)}, {vr(s + k)}")
        A(f"v_mul_f32 {vr(V_L + qb)}, {vr(V_L + qb)}, v6")
        for k in range(8): A(f"v_add_f32 {vr(V_L + qb)}, {vr(V_L + qb)}, {vr(s + k)}")
        for k in range(1, 8, 2): A(cvt_i(8 * qb + k, 0))
        for k in range(32): A(f"v_mul_f32 {vr(V_O + 32*qb + k)}, {vr(V_O + 32*qb + k)}, v6")
    A("s_waitcnt lgkmcnt(0)")
    A("s_nop 1")
    for qb in range(4):
        for t in range(8): A(mfma_pv(qb, t, 0))
    A("s_add_u32 s50, s50, 0x2000")
    A("s_cmp_lt_u32 s50, 0x80000")
    A("s_nop 7")
    A("s_cbranch_scc1 L_slow_loop")
    for qb in range(4):
        l = vr(V_L + qb)
        A(f"v_mov_b32 v5, {l}")
        A("s_nop 1")
        A(f"v_permlane32_swap_b32 {l}, v5")
        A(f"v_add_f32 {l}, {l}, v5")
        A(f"v_mov_b32 v5, {l}")
        A("s_nop 1")
        A(f"v_permlane16_swap_b32 {l}, v5")
        A(f"v_add_f32 {l}, {l}, v5")
    A("s_branch L_store")
    return L

def build(o):
    pro = prologue(o)
    body = []
    for u in range(o.unroll):
        body += step(o, 0, u % 4, False)
        body += step(o, 1, u % 4, u == o.unroll - 1)
    tail = []
    if o.stamps:
        stamp(o, tail)
        tail.append(f"s_cmp_lt_u32 {sr(S_CNT)}, {o.rep * 32 // o.unroll}")
    tail.append("s_cbranch_scc1 L_loop")
    epi = epilogue(o)
    slow = slowpath(o)
    ex = [I(t) for t in pro + body + tail + body + tail + epi]
    e1 = check(ex, "main")
    i0 = slow.index("L_slow_loop:"); i1 = slow.index("s_cbranch_scc1 L_slow_loop")
    ie = epi.index("L_store:")
    ex = [I(t) for t in body + tail + epi[:ie] + slow[:i1 + 1] + slow[i0:] + epi[ie:]]
    e2 = check(ex, "slow")
    lines = pro + [f".p2align {o.align}", "L_loop:"] + body + tail + epi + slow
    txt = "\n".join(("" if t.endswith(":") or t.startswith(".") else "  ") + t for t in lines)
    return wrap(txt, grid=256, block=256, lds=163840, vgpr=512, accum=256, sgpr=96), (e1 or e2)

if __name__ == "__main__":
    ap = argparse.ArgumentParser()
    ap.add_argument("-o", default="k.s")
    ap.add_argument("set", nargs="*")
    a = ap.parse_args()
    o = Opt()
    for kv in a.set:
        k, v = kv.split("=")
        assert hasattr(o, k), k
        setattr(o, k, type(getattr(o, k))(int(v, 0)))
    txt, err = build(o)
    open(a.o, "w").write(txt)
    print("wrote", a.o, "errors" if err else "clean")
```

```python
import re

def regs_of(tok):
    tok = tok.strip()
    neg = tok.lstrip('-')
    if neg.startswith('abs(') or neg.startswith('|'):
        neg = neg.replace('abs(', '').replace(')', '').replace('|', '')
    m = re.fullmatch(r'([vas])(\d+)', neg)
    if m: return [(m.group(1), int(m.group(2)))]
    m = re.fullmatch(r'([vas])\[(\d+):(\d+)\]', neg)
    if m: return [(m.group(1), i) for i in range(int(m.group(2)), int(m.group(3)) + 1)]
    if neg in ('vcc', 'exec', 'm0'): return [('x', neg)]
    return []

TRANS = ('v_exp_f32', 'v_log_f32', 'v_rcp_f32', 'v_rsq_f32', 'v_sqrt_f32')

class I:
    def __init__(self, text):
        self.text = text.strip()
        t = self.text.split(';')[0].strip()
        self.label = t.endswith(':')
        self.directive = t.startswith('.') and not self.label
        self.op = t.split()[0] if t else ''
        rest = t[len(self.op):].strip()
        ops = [o.strip() for o in rest.split(',')] if rest else []
        if ops:
            last = ops[-1].split()
            self.mods = last[1:]
            ops[-1] = last[0] if last else ''
        else:
            self.mods = []
        self.ops = ops
        op = self.op
        self.kind = 'other'
        R = []; W = []
        self.srcC = []; self.srcAB = []
        if self.label or self.directive or not op:
            self.kind = 'meta'
        elif op.startswith('v_mfma'):
            self.kind = 'mfma'; W = regs_of(ops[0]); self.srcAB = regs_of(ops[1]) + regs_of(ops[2]); self.srcC = regs_of(ops[3])
            R = self.srcAB + self.srcC
            self.passes = 4 if '16x16x32' in op else 8
        elif op.startswith('v_smfmac'):
            self.kind = 'mfma'; W = regs_of(ops[0]); self.srcAB = regs_of(ops[1]) + regs_of(ops[2]) + regs_of(ops[3]); self.srcC = regs_of(ops[0])
            R = self.srcAB + self.srcC
            self.passes = 4
        elif op.startswith('ds_read'):
            self.kind = 'ds'; W = regs_of(ops[0]); R = regs_of(ops[1])
        elif op.startswith('ds_write'):
            self.kind = 'ds'; R = sum((regs_of(o) for o in ops), [])
        elif op.startswith('buffer_load'):
            self.kind = 'vmem'
            if 'lds' in self.mods:
                R = sum((regs_of(o) for o in ops), []) + [('x', 'm0')]
            else:
                W = regs_of(ops[0]); R = sum((regs_of(o) for o in ops[1:]), [])
        elif op.startswith('buffer_store'):
            self.kind = 'vmem'; R = sum((regs_of(o) for o in ops), []); self.store = True
        elif op.startswith('global_load'):
            self.kind = 'vmem'; W = regs_of(ops[0]); R = sum((regs_of(o) for o in ops[1:]), [])
        elif op.startswith('v_permlane'):
            self.kind = 'valu'; W = regs_of(ops[0]) + regs_of(ops[1]); R = list(W)
        elif op.startswith('v_cmp'):
            self.kind = 'valu'; W = regs_of(ops[0]); R = sum((regs_of(o) for o in ops[1:]), [])
        elif op.startswith('v_'):
            self.kind = 'valu'; W = regs_of(ops[0]); R = sum((regs_of(o) for o in ops[1:]), [])
            if op.startswith('v_fmac') or op.startswith('v_writelane'): R += W
            if op.startswith('v_cndmask') and len(ops) == 3: R += [('x', 'vcc')]
        elif op.startswith('s_waitcnt'):
            self.kind = 'wait'
            m = re.search(r'vmcnt\((\d+)\)', t); self.vm = int(m.group(1)) if m else None
            m = re.search(r'lgkmcnt\((\d+)\)', t); self.lgkm = int(m.group(1)) if m else None
        elif op == 's_nop':
            self.kind = 'nop'; self.n = int(ops[0]) + 1
        elif op.startswith('s_load') or op.startswith('s_mem'):
            self.kind = 'smem'; W = regs_of(ops[0]); R = sum((regs_of(o) for o in ops[1:]), [])
        elif op.startswith('s_cmp') or op.startswith('s_cbranch') or op in ('s_branch', 's_barrier', 's_endpgm', 's_setprio', 's_sleep'):
            self.kind = 'salu'; R = sum((regs_of(o) for o in ops), [])
        elif op.startswith('s_'):
            self.kind = 'salu'; W = regs_of(ops[0]); R = sum((regs_of(o) for o in ops[1:]), [])
        else:
            raise ValueError("unknown op: " + text)
        self.R = set(R); self.W = set(W)
        self.trans = any(op.startswith(x) for x in TRANS)
    def __repr__(self): return self.text

def check(seq, name=""):
    errs = []
    ins = [x for x in seq if x.kind != 'meta']
    pos = []; p = 0
    for x in ins:
        pos.append(p); p += x.n if x.kind == 'nop' else 1
    def dist(i, j):
        return pos[j] - pos[i] - (ins[i].n if ins[i].kind == 'nop' else 1)
    lds_q = []
    vm_q = []
    smem_out = []
    for j, y in enumerate(ins):
        if y.kind == 'wait':
            if y.lgkm is not None:
                if y.lgkm == 0: smem_out = []
                while len(lds_q) > y.lgkm: lds_q.pop(0)
            if y.vm is not None:
                while len(vm_q) > y.vm: vm_q.pop(0)
        else:
            touch = y.R | y.W
            for i in lds_q:
                if ins[i].W & touch: errs.append(f"LDS result not waited: [{ins[i]}] -> [{y}]")
            for i in vm_q:
                if ins[i].W & touch: errs.append(f"VMEM result not waited: [{ins[i]}] -> [{y}]")
            for i in smem_out:
                if ins[i].W & touch: errs.append(f"SMEM result not waited: [{ins[i]}] -> [{y}]")
            if y.kind == 'ds': lds_q.append(j)
            if y.kind == 'vmem': vm_q.append(j)
            if y.kind == 'smem': smem_out.append(j)
            if len(lds_q) > 15 + 100: pass
        for i in range(j - 1, max(-1, j - 24), -1):
            x = ins[i]; d = dist(i, j)
            if d >= 20: break
            def need(n, why):
                if d < n: errs.append(f"hazard {why}: need {n} have {d}: [{x}] -> [{y}]")
            if x.kind == 'mfma':
                full = {4: 8, 8: 12}[x.passes]
                if y.kind == 'mfma':
                    if x.W & set(y.srcAB): need(full, "mfma D->AB")
                    if x.W & set(y.srcC):
                        if not (x.W == set(y.srcC) and x.passes == y.passes): need({4: 6, 8: 10}[x.passes], "mfma D->C overlap")
                    elif x.W & y.W: need(full, "mfma D->D waw")
                elif y.kind in ('valu', 'ds', 'vmem'):
                    if x.W & (y.R | y.W): need(full, "mfma D->valu/mem")
                    if y.kind == 'valu' and set(x.srcC) & y.W: need({4: 3, 8: 7}[x.passes], "mfma C war")
            if x.kind == 'valu':
                vw = {r for r in x.W if r[0] in 'va'}
                sw = {r for r in x.W if r[0] == 's' or r == ('x', 'vcc')}
                if y.kind == 'mfma' and vw & y.R: need(2, "valu->mfma")
                if x.trans and y.kind == 'valu' and not y.trans and vw & y.R: need(1, "trans->valu")
                if y.op.startswith('v_permlane') and vw & y.R: need(2, "valu->permlane")
                if (y.op.startswith('v_readlane') or y.op.startswith('v_readfirstlane')) and vw & y.R: need(1, "valu->readlane")
                if y.kind == 'vmem' and sw & y.R: need(5, "valu sgpr->vmem")
                if y.kind == 'valu' and sw & y.R: need(2, "valu sgpr->valu")
                if 'dpp' in y.text and vw & y.R: need(2, "valu->dpp")
            if x.kind == 'vmem' and getattr(x, 'store', False) and ('x4' in x.op or 'x3' in x.op):
                data = set(regs_of(x.ops[0]))
                if data & y.W: need(2, "store data war")
            if x.kind == 'salu' and ('x', 'm0') in x.W and y.kind == 'vmem' and ('x', 'm0') in y.R: need(1, "m0->lds dma")
    if errs:
        print(f"CHECK {name}: {len(errs)} problems")
        for e in errs[:40]: print("   ", e)
    return errs

_cache = {}
def mk(t):
    if t not in _cache: _cache[t] = I(t)
    return _cache[t]

def missing(prev, t):
    y = mk(t)
    if y.kind == 'meta': return 0
    d = 0; worst = 0
    for s in reversed(prev):
        x = mk(s)
        if x.kind == 'meta': continue
        if d >= 20: break
        n = 0
        if x.kind == 'mfma':
            full = {4: 8, 8: 12}[x.passes]
            if y.kind == 'mfma':
                if x.W & set(y.srcAB): n = full
                elif x.W & set(y.srcC):
                    if not (x.W == set(y.srcC) and x.passes == y.passes): n = {4: 6, 8: 10}[x.passes]
                elif x.W & y.W: n = full
            elif y.kind in ('valu', 'ds', 'vmem'):
                if x.W & (y.R | y.W): n = full
                elif y.kind == 'valu' and set(x.srcC) & y.W: n = {4: 3, 8: 7}[x.passes]
        if x.kind == 'valu':
            vw = {r for r in x.W if r[0] in 'va'}
            sw = {r for r in x.W if r[0] == 's' or r == ('x', 'vcc')}
            if y.kind == 'mfma' and vw & y.R: n = max(n, 2)
            if x.trans and y.kind == 'valu' and not y.trans and vw & y.R: n = max(n, 1)
            if y.op.startswith('v_permlane') and vw & y.R: n = max(n, 2)
            if (y.op.startswith('v_readlane') or y.op.startswith('v_readfirstlane')) and vw & y.R: n = max(n, 1)
            if y.kind == 'vmem' and sw & y.R: n = max(n, 5)
            if y.kind == 'valu' and sw & y.R: n = max(n, 2)
        if x.kind == 'vmem' and getattr(x, 'store', False) and ('x4' in x.op or 'x3' in x.op):
            if set(regs_of(x.ops[0])) & y.W: n = max(n, 2)
        if x.kind == 'salu' and ('x', 'm0') in x.W and y.kind == 'vmem' and ('x', 'm0') in y.R: n = max(n, 1)
        worst = max(worst, n - d)
        d += x.n if x.kind == 'nop' else 1
    return worst

def fix(seq, ctx=()):
    out = list(ctx); n0 = len(out)
    for t in seq:
        m = missing(out, t)
        if m > 0: out.append(f"s_nop {m - 1}")
        out.append(t)
    return out[n0:]
```

```python
import sys, argparse, math, struct
sys.path.insert(0, "work")
from common import wrap
from asmlib import I, check, missing, fix

class Opt:
    stamps = 0
    exp64 = 1
    force_slow = 0
    thr = 0x53800000
    pad4 = 0
    align = 3
    stflags = 1
    cpf = 1
    diag = 0
    q_first = 2
    bar2 = 0
    nobar = 0
    nodma = 0

V_O = 128
V_S = 96
V_P = 64
V_NM = 48
V_KR = 32
V_VR = 36
V_KD = 44
V_VD = 30
V_IDX = 29
V_EW = 28
V_OO = 27
V_ER = 24
V_ST0 = 25; V_ST1 = 26
V_QD = 16
V_QR = 20
V_L = 8
A_Q = 0
A_K = 64
A_V = 96
A_L = 128
A_ONE = 144
A_SC = 148
S_Q = 12; S_K = 16; S_V = 20; S_O = 24
S_MK = 28; S_MV = 32
S_OFF = 36
S_CNT = 37
S_W = 38
S_4K = 40
S_QB = 52
S_STN = 64

def vr(b, n=1): return f"v{b}" if n == 1 else f"v[{b}:{b+n-1}]"
def ar(b, n=1): return f"a{b}" if n == 1 else f"a[{b}:{b+n-1}]"
def sr(b, n=1): return f"s{b}" if n == 1 else f"s[{b}:{b+n-1}]"
def O(qb, t): return V_O + 32 * qb + 4 * t
def S(qb, kb): return V_S + 8 * qb + 4 * kb
def P(qb, par): return V_P + 8 * qb + 4 * par
MF = "v_mfma_f32_16x16x32_bf16"

def mfma_qk(qb, kb, c, czero=False):
    d = vr(S(qb, kb), 4)
    cc = d if c else ("0" if czero else vr(V_NM + 4 * qb, 4))
    return f"{MF} {d}, {ar(A_K + 4*(kb*4+c), 4)}, {ar(A_Q + 16*qb + 4*c, 4)}, {cc}"
def mfma_pv(qb, t, par, fb=A_V):
    d = vr(O(qb, t), 4)
    return f"{MF} {d}, {ar(fb + 4*t, 4)}, {vr(P(qb, par), 4)}, {d}"
def smf(qb):
    return f"v_smfmac_f32_16x16x64_bf16 {ar(A_L + 4*qb, 4)}, {ar(A_ONE, 4)}, {vr(P(qb, 0), 8)}, {vr(V_IDX)}"
def sreg(e): return V_S + e
def exp_i(e, wide=False): return f"v_exp_f32_e{'64' if wide else '32'} {vr(sreg(e))}, {vr(sreg(e))}"
def cvt_i(e, par):
    return f"v_cvt_pk_bf16_f32 {vr(P(e // 8, par) + (e % 8) // 2)}, {vr(sreg(e-1))}, {vr(sreg(e))}"
def kread(st, kb16, kb, c): return f"ds_read_b128 {ar(A_K + 4*(kb*4+c), 4)}, {vr(V_KR + c)} offset:{st*16384 + kb16*4096}"
def vread(st, half, t, pp, fb=A_V): return f"ds_read_b64_tr_b16 {ar(fb + 4*t + 2*pp, 2)}, {vr(V_VR + t)} offset:{st*16384 + (32*half + 16*pp)*256}"
def kdma(j): return f"buffer_load_dwordx4 {vr(V_KD + j)}, {sr(S_K, 4)}, {sr(S_OFF)} offen offset:{1024*j} lds"
def vdma(j): return f"buffer_load_dwordx4 {vr(V_VD + j % 2)}, {sr(S_V, 4)}, {sr(S_OFF)} offen offset:{1024*j} lds"

def stamp(o, out, lvl=1):
    if o.stamps < lvl: return
    out += ["s_memrealtime s[66:67]", "s_memtime s[68:69]", "s_waitcnt lgkmcnt(0)",
            "s_mov_b32 s70, m0", f"s_mov_b32 m0, {sr(S_STN)}",
            f"v_writelane_b32 {vr(V_ST0)}, s66, m0", f"v_writelane_b32 {vr(V_ST1)}, s68, m0", "s_mov_b32 m0, s70",
            f"s_add_u32 {sr(S_STN)}, {sr(S_STN)}, 1"]

EXP0 = 9
NSL = 66

def cost(t):
    op = t.split()[0]
    if op.startswith("v_exp") or op.startswith("v_rcp") or op.startswith("v_permlane"): return 8
    if op == "s_nop": return 4 * (int(t.split()[1]) + 1)
    return 4
def is_mem(t): return t.startswith("ds_") or t.startswith("buffer_")
def is_valu(t): return t.startswith("v_")

def weave(mf, streams, budget=8, ctx=()):
    out = list(ctx); n0 = len(out)
    streams = [list(s) for s in streams]
    for g, m in enumerate(mf):
        out.append(m)
        b = budget; valu_seen = False
        while True:
            pick = None
            cands = [s for s in streams if s and s[0][1] <= g]
            forced = [s for s in cands if len(s[0]) > 2 and s[0][2] <= g]
            pool = forced or [s for s in cands if cost(s[0][0]) <= b and not (is_mem(s[0][0]) and valu_seen) and not missing(out, s[0][0])]
            if not pool: break
            mems = [s for s in pool if is_mem(s[0][0])]
            pick = (mems or pool)[0]
            t = pick.pop(0)[0]
            out.append(t); b -= cost(t); valu_seen |= is_valu(t)
    while any(streams):
        live = [s for s in streams if s]
        pick = min(live, key=lambda s: missing(out, s[0][0]))
        out.append(pick.pop(0)[0])
    return out[n0:]

def step(o, par, st, u, tail=False):
    mf = [mfma_qk(s // 8, (s % 8) // 4, s % 4) for s in range(32)]
    pv = [mfma_pv(s // 8, s % 8, par) for s in range(32)]
    if par == 0: mf += pv[:8] + [smf(0)] + pv[8:16] + [smf(1)] + pv[16:]
    else: mf += [smf(2)] + pv[:8] + [smf(3)] + pv[8:]
    n = len(mf)
    fill = [[] for _ in range(n)]
    cv = [[] for _ in range(n)]
    for e in range(32):
        g = EXP0 + 2 * e; p = 1 - par
        if g >= n: g -= n; p = par
        fill[g].append(exp_i(e, o.exp64))
        if e % 2 == 1: cv[g + 1].append(cvt_i(e, p))
    vg = [0, 0, 2, 4, 4, 6, 7, 8, 10, 12, 14, 16, 18, 20, 22, 24]
    for k, g in enumerate(vg): fill[g].append(vread(st, par, k // 2, k % 2))
    if not tail:
        kg = [34, 36, 38, 40, 42, 44, 46, 48]
        for k, g in enumerate(kg): fill[g].append(kread(st, 2 * par + k // 4, k // 4, k % 4))
        dst = (st + 2) % 4
        fill[26].append(f"s_mov_b32 m0, {sr((S_MK if par == 0 else S_MV) + dst)}")
        for j, g in enumerate([50, 52, 54, 56]): fill[g].append(kdma(j) if par == 0 else vdma(j))
    else:
        vg = [34, 34, 36, 38, 38, 40, 42, 42, 44, 46, 46, 48, 50, 50, 52, 54]
        for k, g in enumerate(vg): fill[g].append(vread(st, 1, k // 2, k % 2, fb=A_K))
    for g in range(n): fill[g] += cv[g]
    fill[30].append("s_waitcnt lgkmcnt(0)")
    if par == 0:
        fill[62].append("s_waitcnt lgkmcnt(0)")
    else:
        fill[58].append(f"s_add_u32 {sr(S_OFF)}, {sr(S_OFF)}, 0x4000")
        fill[62] += ["s_waitcnt vmcnt(8) lgkmcnt(0)", "s_barrier"]
        if u == 2:
            fill[30].append(f"s_add_u32 {sr(S_CNT)}, {sr(S_CNT)}, 1")
            fill[58].append(f"s_cmp_eq_u32 {sr(S_CNT)}, 8")
    out = []
    for g in range(n):
        out.append(mf[g])
        f = list(fill[g])
        if o.nobar: f = [t for t in f if t != "s_barrier"]
        if o.nodma: f = [t for t in f if not t.startswith("buffer_load")]
        out += f
    return out

def bf16_rne(x):
    u = struct.unpack("<I", struct.pack("<f", x))[0]
    u = (u + 0x7fff + ((u >> 16) & 1)) >> 16
    return u, struct.unpack("<f", struct.pack("<I", u << 16))[0]

def prologue(o):
    L = []
    A = L.append
    A("s_cmp_ge_u32 s2, 0x100")
    A("s_cbranch_scc1 L_end")
    if o.stamps:
        A(f"s_mov_b32 {sr(S_STN)}, 0")
        A(f"v_mov_b32 {vr(V_ST0)}, 0"); A(f"v_mov_b32 {vr(V_ST1)}, 0")
        stamp(o, L)
        A("s_load_dwordx2 s[60:61], s[0:1], 40")
    if o.diag: A("s_memrealtime s[72:73]")
    A("s_load_dwordx4 s[4:7], s[0:1], 0")
    A("s_load_dwordx4 s[8:11], s[0:1], 16")
    if o.cpf:
        A("s_getpc_b64 s[54:55]")
        A("v_lshlrev_b32 v7, 6, v0")
        A("global_load_dword v7, v7, s[54:55]")
    A("v_lshrrev_b32 v3, 6, v0")
    A("v_and_b32 v1, 15, v0")
    A("v_bfe_u32 v2, v0, 4, 2")
    A(f"v_readfirstlane_b32 {sr(S_W)}, v3")
    A("v_xor_b32 v4, v1, v2")
    A("v_lshlrev_b32 v5, 12, v3")
    A("v_lshl_add_u32 v5, v2, 8, v5")
    A(f"v_lshl_add_u32 {vr(V_KD)}, v4, 4, v5")
    A("s_and_b32 s46, s2, 7")
    A("s_lshr_b32 s47, s2, 3")
    A("s_lshl_b32 s48, s46, 21")
    A("s_lshl_b32 s47, s47, 16")
    A("s_add_u32 s48, s48, s47")
    A("s_lshl_b32 s46, s46, 19")
    for j in range(1, 4): A(f"v_xor_b32 {vr(V_KD + j)}, {j << 6}, {vr(V_KD)}")
    A("v_mul_u32_u24 v6, 0x3000, v3")
    for j in range(4): A(f"v_add_u32 {vr(V_QD + j)}, v6, {vr(V_KD + j)}")
    A(f"s_lshl_b32 s49, {sr(S_W)}, 12")
    A(f"s_add_u32 {sr(S_MK + 3)}, s49, 0xc000")
    A(f"s_lshl_b32 {sr(S_QB)}, {sr(S_W)}, 14")
    A(f"s_add_u32 {sr(S_QB)}, {sr(S_QB)}, 0x14000")
    A(f"s_cmp_eq_u32 {sr(S_W)}, 0")
    A(f"s_cselect_b32 {sr(S_QB)}, 0x8000, {sr(S_QB)}")
    A(f"s_mov_b32 {sr(S_4K)}, 0")
    for k in range(1, 4): A(f"s_movk_i32 {sr(S_4K + k)}, {hex(4096 * k)}")
    A(f"s_mov_b32 {sr(S_OFF)}, 0")
    A(f"s_mov_b32 m0, {sr(S_MK + 3)}")
    A(f"s_mov_b32 {sr(S_K + 2)}, 0x80000")
    A(f"s_mov_b32 {sr(S_K + 3)}, 0x20000")
    A(f"s_mov_b32 {sr(S_Q + 2)}, 0x10000")
    A(f"s_mov_b32 {sr(S_Q + 3)}, 0x20000")
    pre = []
    B = pre.append
    B(f"v_lshlrev_b32 v6, 8, v1")
    B(f"v_lshl_add_u32 {vr(V_KR)}, v4, 4, v6")
    for c in range(1, 4): B(f"v_xor_b32 {vr(V_KR + c)}, {c << 6}, {vr(V_KR)}")
    for c in range(4): B(f"v_add_u32 {vr(V_QR + c)}, {sr(S_QB)}, {vr(V_KR + c)}")
    B("v_lshrrev_b32 v6, 1, v1")
    B("v_xor_b32 v6, v6, v2")
    B("v_lshl_add_u32 v6, v6, 5, v5")
    B("v_and_b32 v8, 1, v1")
    B(f"v_lshl_add_u32 {vr(V_VD)}, v8, 4, v6")
    B(f"v_xor_b32 {vr(V_VD + 1)}, 0x80, {vr(V_VD)}")
    chi, fhi = bf16_rne(math.log2(math.e) / math.sqrt(128.0))
    clo, _ = bf16_rne(math.log2(math.e) / math.sqrt(128.0) - fhi)
    B("v_lshrrev_b32 v9, 2, v1")
    B("v_lshlrev_b32 v10, 4, v8")
    B("v_cmp_eq_u32 vcc, v9, v2")
    B(f"v_lshlrev_b32_e64 v11, v10, {hex(chi)}" if False else f"v_mov_b32 v11, {hex(chi)}")
    B(f"v_mov_b32 v12, {hex(clo)}")
    B("v_lshlrev_b32 v11, v10, v11")
    B("v_lshlrev_b32 v12, v10, v12")
    B("v_cndmask_b32 v11, 0, v11, vcc")
    B("v_cndmask_b32 v12, 0, v12, vcc")
    B("v_and_b32 v10, 2, v1")
    B("v_cmp_eq_u32 vcc, 0, v10")
    for k in (0, 1, 4, 5, 6, 7, 10, 11): B(f"v_accvgpr_write_b32 {ar(A_SC + k)}, 0")
    B("v_cndmask_b32 v13, 0, v11, vcc")
    B("v_cndmask_b32 v14, v11, 0, vcc" if False else "v_sub_u32 v14, v11, v13")
    B("v_cndmask_b32 v15, 0, v12, vcc")
    B(f"v_accvgpr_write_b32 {ar(A_SC + 2)}, v13")
    B(f"v_accvgpr_write_b32 {ar(A_SC + 3)}, v14")
    B("v_sub_u32 v14, v12, v15")
    B(f"v_accvgpr_write_b32 {ar(A_SC + 8)}, v15")
    B(f"v_accvgpr_write_b32 {ar(A_SC + 9)}, v14")
    post = []
    B = post.append
    for s in range(3): B(f"s_add_u32 {sr(S_MK + s)}, s49, {hex(s * 16384)}")
    for s in range(4): B(f"s_add_u32 {sr(S_MV + s)}, s49, {hex(65536 + s * 16384)}")
    B("s_sub_u32 s50, s8, 0x4000")
    B("s_subb_u32 s51, s9, 0")
    B(f"s_add_u32 {sr(S_V)}, s50, s46")
    B(f"s_addc_u32 {sr(S_V + 1)}, s51, 0")
    B(f"s_add_u32 {sr(S_O)}, s10, s48")
    B(f"s_addc_u32 {sr(S_O + 1)}, s11, 0")
    B(f"s_mov_b32 {sr(S_V + 2)}, 0x84000")
    B(f"s_mov_b32 {sr(S_V + 3)}, 0x20000")
    B(f"s_mov_b32 {sr(S_O + 2)}, 0x10000")
    B(f"s_mov_b32 {sr(S_O + 3)}, 0x20000")
    B(f"s_mov_b32 {sr(S_CNT)}, 0")
    B("v_lshl_add_u32 v6, v2, 2, v9")
    B("v_and_b32 v10, 7, v6")
    B("v_lshlrev_b32 v6, 8, v6")
    B("v_lshl_add_u32 v6, v10, 5, v6")
    B("v_and_b32 v10, 3, v1")
    B("v_lshl_add_u32 v6, v10, 3, v6")
    B(f"v_add_u32 {vr(V_VR)}, 0x10000, v6")
    for t in range(1, 8): B(f"v_xor_b32 {vr(V_VR + t)}, {t << 5}, {vr(V_VR)}")
    B("v_mov_b32 v6, 0x44444444")
    B("v_cmp_eq_u32 vcc, 1, v8")
    B("v_mov_b32 v10, 0xeeeeeeee")
    B("v_mov_b32 v11, 0x3f803f80")
    B(f"v_cndmask_b32 {vr(V_IDX)}, v6, v10, vcc")
    for k in range(4): B(f"v_accvgpr_write_b32 {ar(A_ONE + k)}, v11")
    for k in range(16): B(f"v_accvgpr_write_b32 {ar(A_L + k)}, 0")
    B("v_and_b32 v6, 1, v3")
    B("v_lshrrev_b32 v10, 1, v3")
    B("v_lshlrev_b32 v6, 14, v6")
    B("v_lshl_add_u32 v6, v10, 16, v6")
    B("v_add_u32 v6, 0x4000, v6")
    B("v_mul_u32_u24 v10, 0x110, v1")
    B("v_lshl_add_u32 v10, v2, 3, v10")
    B(f"v_add_u32 {vr(V_EW)}, v6, v10")
    B("v_mul_u32_u24 v10, 0x110, v2")
    B("v_lshl_add_u32 v10, v1, 4, v10")
    B(f"v_add_u32 {vr(V_ER)}, v6, v10")
    B("v_and_b32 v6, 63, v0")
    B("v_lshlrev_b32 v6, 4, v6")
    B(f"v_lshl_add_u32 {vr(V_OO)}, v3, 14, v6")
    for k in range(0, 128, 2): B(f"v_mov_b64 {vr(V_O + k, 2)}, 0")
    L += pre
    A("s_waitcnt lgkmcnt(0)")
    stamp(o, L, 2)
    A(f"s_add_u32 {sr(S_K)}, s6, s46")
    A(f"s_addc_u32 {sr(S_K + 1)}, s7, 0")
    A(f"s_add_u32 {sr(S_Q)}, s4, s48")
    A(f"s_addc_u32 {sr(S_Q + 1)}, s5, 0")
    for j in range(4): A(kdma(j))
    def qdma(qb):
        A(f"s_add_u32 m0, {sr(S_QB)}, {hex(4096 * qb)}")
        A("s_nop 0")
        for j in range(4):
            A(f"buffer_load_dwordx4 {vr(V_QD + j)}, {sr(S_Q, 4)}, {sr(S_4K + qb)} offen offset:{1024*j} lds")
    for qb in range(o.q_first): qdma(qb)
    stamp(o, L, 2)
    L += post
    stamp(o, L, 2)
    for qb in range(o.q_first, 4): qdma(qb)
    def stage_dma(k):
        st = k // 2; r = []
        if k % 2 == 0: r.append(f"s_add_u32 {sr(S_OFF)}, {sr(S_OFF)}, 0x4000")
        r.append(f"s_mov_b32 m0, {sr((S_MV if k % 2 == 0 else S_MK) + st)}")
        r.append("s_nop 0")
        for j in range(4): r.append(vdma(j) if k % 2 == 0 else kdma(j))
        if k == 3: r.append(f"s_add_u32 {sr(S_OFF)}, {sr(S_OFF)}, 0x4000")
        return r
    stamp(o, L)
    A("s_waitcnt vmcnt(16)")
    A("s_barrier")
    for k in range(8): A(kread(3, k // 4, k // 4, k % 4))
    stamp(o, L, 2)
    def softmax0(qb):
        s = S(qb, 0); r = []; B = r.append
        B(f"v_max3_f32 v4, {vr(s)}, {vr(s+1)}, {vr(s+2)}")
        B(f"v_max3_f32 v5, {vr(s+3)}, {vr(s+4)}, {vr(s+5)}")
        B(f"v_max3_f32 v4, v4, {vr(s+6)}, {vr(s+7)}")
        B("v_max_f32 v4, v4, v5")
        B("v_mov_b32 v5, v4")
        B("v_permlane32_swap_b32 v4, v5")
        B("v_max_f32 v4, v4, v5")
        B("v_mov_b32 v5, v4")
        B("v_permlane16_swap_b32 v4, v5")
        B("v_max_f32 v4, v4, v5")
        for k in range(8): B(f"v_sub_f32 {vr(s + k)}, {vr(s + k)}, v4")
        es = [8 * qb + k for k in range(8) if EXP0 + 2 * (8 * qb + k) < NSL]
        for i, e in enumerate(es):
            B(exp_i(e))
            if i < 4: B(f"v_sub_f32 {vr(V_NM + 4*qb + i)}, 0, v4")
            if i >= 2 and e % 2 == 0: B(cvt_i(e - 1, 0))
        if es[-1] % 2 == 1: B(cvt_i(es[-1], 0))
        return r
    TD = [P(0, 1), P(1, 1), P(2, 1), P(3, 1), 8, 12]
    def qread(qb): return [f"ds_read_b128 {ar(A_Q + 16*qb + 4*c, 4)}, {vr(V_QR + c)} offset:{4096 * qb}" for c in range(4)]
    A("s_waitcnt vmcnt(12)")
    stamp(o, L, 2)
    L += qread(0)
    pend = []
    for qb in range(4):
        mf = []; conv = []
        for c in range(4):
            q = ar(A_Q + 16 * qb + 4 * c, 4)
            d0 = TD[(2 * c) % 6]; d1 = TD[(2 * c + 1) % 6]
            mf += [f"{MF} {vr(d0, 4)}, {ar(A_SC + 2, 4)}, {q}, 0", f"{MF} {vr(d1, 4)}, {ar(A_SC, 4)}, {q}, 0",
                   f"{MF} {vr(d0, 4)}, {ar(A_SC + 8, 4)}, {q}, {vr(d0, 4)}", f"{MF} {vr(d1, 4)}, {ar(A_SC + 6, 4)}, {q}, {vr(d1, 4)}"]
            e0 = 4 * c + 3 + 3
            for k, d in enumerate([d0, d0 + 2, d1, d1 + 2]): conv.append((f"v_cvt_pk_bf16_f32 {vr(d)}, {vr(d)}, {vr(d + 1)}", e0))
            for k, d in enumerate([d0, d0 + 2, d1, d1 + 2]): conv.append((f"v_accvgpr_write_b32 {ar(A_Q + 16*qb + 4*c + k)}, {vr(d)}", e0))
        for k in range(8): conv[k] = conv[k] + (11 if k < 6 else 12,)
        qk = [mfma_qk(qb, kb, c, czero=True) for c in range(4) for kb in range(2)]
        A("s_waitcnt lgkmcnt(0)")
        x = [(t, 1) for t in pend]
        body = weave(mf, [conv[:24], x], budget=12, ctx=L)
        L += body
        rest = conv[24:]
        nxt = []
        if qb < 3:
            nxt = [f"s_waitcnt vmcnt({4 * (2 - qb) + 4 * qb})"] + qread(qb + 1)
        else:
            nxt = []
        L += qk[:2] + [t for t, _ in rest[:4]] + qk[2:4] + [t for t, _ in rest[4:]] + qk[4:6]
        if qb < 3: L += nxt[:1]
        L += qk[6:]
        L += nxt[1:]
        if qb == 3:
            for k in range(8): A(kread(3, 2 + k // 4, k // 4, k % 4))
        L += stage_dma(qb)
        stamp(o, L, 2)
        pend = softmax0(qb)
    L += pend
    A("s_waitcnt vmcnt(8) lgkmcnt(0)")
    A("s_barrier")
    if o.diag == 3: A("s_memrealtime s[74:75]"); A("s_waitcnt lgkmcnt(0)")
    stamp(o, L)
    return fix(L)

def norm_ops(qb, packed):
    r = []
    slot = 4352 * (qb % 3)
    for t in range(8):
        b = O(qb, t)
        if packed:
            r += [f"v_pk_mul_f32 {vr(b + k, 2)}, {vr(b + k, 2)}, {vr(12 + 2*qb, 2)}" for k in (0, 2)]
        else:
            r += [f"v_mul_f32 {vr(b + k)}, {vr(b + k)}, {vr(12 + 2*qb)}" for k in range(4)]
        r += [f"v_cvt_pk_bf16_f32 {vr(b + k)}, {vr(b + 2*k)}, {vr(b + 2*k + 1)}" for k in range(2)]
    w = [f"ds_write_b64 {vr(V_EW)}, {vr(O(qb, t), 2)} offset:{slot + 32*t}" for t in range(8)]
    rd = [f"ds_read_b128 {vr(O(qb, 2*j) + 4, 4)}, {vr(V_ER)} offset:{slot + 1088*j}" for j in range(4)]
    return r, w, rd

def store_i(o, qb, j):
    return f"buffer_store_dwordx4 {vr(O(qb, 2*j) + 4, 4)}, {vr(V_OO)}, {sr(S_O, 4)}, {sr(S_4K + qb)} offen offset:{1024*j}" + ["", " sc0 sc1", " sc1", " nt"][o.stflags]

def finish(o, first):
    L = []; A = L.append
    prev = None
    for qb in range(first, 4):
        r, w, rd = norm_ops(qb, True)
        h = len(r) // 2
        L += r[:h] + w[:4] + r[h:]
        if prev is not None:
            A("s_waitcnt lgkmcnt(4)")
            L += [store_i(o, prev, j) for j in range(4)]
        L += w[4:] + rd
        prev = qb
        stamp(o, L, 2)
    A("s_waitcnt lgkmcnt(0)")
    L += [store_i(o, prev, j) for j in range(4)]
    return L

def tail(o, ctx):
    L = []; A = L.append
    pv = [mfma_pv(s // 8, s % 8, 1, fb=A_K) for s in range(32)]
    mf = [smf(2)] + pv[:8] + [smf(3)] + pv[8:]
    ex = [(exp_i(29), 0), (cvt_i(29, 1), 1), (exp_i(30), 2), (exp_i(31), 3), (cvt_i(31, 1), 4)]
    lsum = []
    def lops(qb, g):
        return [(f"v_accvgpr_read_b32 {vr(V_L + qb)}, {ar(A_L + 4*qb)}", g), (f"v_accvgpr_read_b32 {vr(4 + qb)}, {ar(A_L + 4*qb + 1)}", g),
                (f"v_add_f32 {vr(V_L + qb)}, {vr(V_L + qb)}, {vr(4 + qb)}", g), (f"v_rcp_f32 {vr(12 + 2*qb)}, {vr(V_L + qb)}", g)]
    r0, w0, rd0 = norm_ops(0, False)
    st = ex + lops(0, 4) + lops(1, 4) + lops(2, 6) + [(t, 13) for t in r0[:12]] + lops(3, 14) + [(t, 13) for t in r0[12:]]
    L += weave(mf, [st], ctx=ctx)
    for qb in range(1, 4): A(f"v_mov_b32 {vr(13 + 2*qb)}, {vr(12 + 2*qb)}")
    L += w0
    A(f"v_add_f32 v5, {vr(V_L)}, {vr(V_L+1)}")
    A(f"v_add_f32 v6, {vr(V_L+2)}, {vr(V_L+3)}")
    A(f"s_mov_b32 s46, {hex(o.thr)}")
    A("v_add_f32 v5, v5, v6")
    L += rd0
    A("v_cmp_nge_f32 vcc, s46, v5")
    A("s_nop 4")
    A("s_branch L_slow" if o.force_slow else "s_cbranch_vccnz L_slow")
    stamp(o, L)
    def spin(lim):
        A("L_spin:"); A("s_memrealtime s[76:77]"); A("s_waitcnt lgkmcnt(0)"); A("s_sub_u32 s76, s76, s72")
        A(f"s_cmp_lt_u32 s76, {lim}"); A("s_cbranch_scc1 L_spin")
    if o.diag == 2: spin("12000")
    A("s_waitcnt lgkmcnt(0)")
    L += [store_i(o, 0, j) for j in range(4)]
    L += finish(o, 1)
    A("L_fin:")
    if o.diag == 1: spin("12000")
    if o.diag == 3:
        A("s_sub_u32 s78, s74, s72"); A("s_mul_i32 s78, s78, 10"); A("s_add_u32 s78, s78, 12000"); spin("s78")
    if o.stamps:
        stamp(o, L)
        A("s_waitcnt vmcnt(0)")
        stamp(o, L)
        A("s_mov_b32 s62, 0x10000000"); A("s_mov_b32 s63, 0x20000")
        A("v_lshlrev_b32 v4, 3, v0"); A("s_lshl_b32 s3, s2, 11"); A("v_add_u32 v4, s3, v4")
        A(f"v_mov_b32 v6, {vr(V_ST0)}"); A(f"v_mov_b32 v7, {vr(V_ST1)}")
        A("buffer_store_dwordx2 v[6:7], v4, s[60:63], 0 offen")
    A("L_end:")
    A("s_endpgm")
    return fix(L, ctx)

def slowpath(o):
    L = []; A = L.append
    VM = 48
    A("L_slow:")
    A("s_waitcnt vmcnt(0) lgkmcnt(0)")
    A("v_lshlrev_b32 v14, 8, v1")
    A("v_lshl_add_u32 v14, v2, 4, v14")
    A(f"s_lshl_b32 s46, {sr(S_W)}, 12")
    A(f"v_subrev_u32 v15, s46, {vr(V_VD)}")
    A(f"v_subrev_u32 v16, s46, {vr(V_VD + 1)}")
    A(f"s_lshl_b32 s47, {sr(S_W)}, 13")
    A("s_add_u32 s47, s47, 0x20000")
    A("s_sub_u32 s48, s47, 0x10000")
    for t in range(8): A(f"v_add_u32 {vr(V_VR + t)}, s48, {vr(V_VR + t)}")
    A("s_add_u32 s48, s47, 0x1000")
    for k in range(0, 128, 2): A(f"v_mov_b64 {vr(V_O + k, 2)}, 0")
    for qb in range(4):
        A(f"v_mov_b32 {vr(VM + qb)}, 0xff800000")
        A(f"v_mov_b32 {vr(V_L + qb)}, 0")
    A("s_mov_b32 s50, 0")
    A("L_slow_loop:")
    A("s_add_u32 s51, s50, 0x1000")
    A("s_add_u32 s52, s50, 0x4000")
    A("s_add_u32 s53, s50, 0x5000")
    for kb in range(2):
        for c in range(4):
            A(f"buffer_load_dwordx4 {ar(A_K + 4*(kb*4+c), 4)}, v14, {sr(S_K, 4)}, s{50 + kb} offen offset:{64*c}")
    for h in range(2):
        A(f"s_mov_b32 m0, s{47 + h}")
        A("s_nop 0")
        for j in range(4):
            A(f"buffer_load_dwordx4 v{15 + j % 2}, {sr(S_V, 4)}, s{52 + h} offen offset:{1024*j} lds")
    A("s_waitcnt vmcnt(0)")
    for t in range(8):
        for pp in range(2): A(vread(0, 0, t, pp))
    for qb in range(4):
        for kb in range(2):
            for c in range(4): A(mfma_qk(qb, kb, c, czero=True))
    A("s_nop 7")
    for qb in range(4):
        s = S(qb, 0)
        A(f"v_max3_f32 v4, {vr(s)}, {vr(s+1)}, {vr(s+2)}")
        A(f"v_max3_f32 v5, {vr(s+3)}, {vr(s+4)}, {vr(s+5)}")
        A(f"v_max3_f32 v4, v4, {vr(s+6)}, {vr(s+7)}")
        A(f"v_max3_f32 v4, v4, v5, {vr(VM + qb)}")
        A("v_mov_b32 v5, v4")
        A("s_nop 1")
        A("v_permlane32_swap_b32 v4, v5")
        A("v_max_f32 v4, v4, v5")
        A("v_mov_b32 v5, v4")
        A("s_nop 1")
        A("v_permlane16_swap_b32 v4, v5")
        A("v_max_f32 v4, v4, v5")
        A(f"v_sub_f32 v6, {vr(VM + qb)}, v4")
        A("v_exp_f32 v6, v6")
        A(f"v_mov_b32 {vr(VM + qb)}, v4")
        for k in range(8): A(f"v_sub_f32 {vr(s + k)}, {vr(s + k)}, v4")
        for k in range(8): A(f"v_exp_f32 {vr(s + k)}, {vr(s + k)}")
        A(f"v_mul_f32 {vr(V_L + qb)}, {vr(V_L + qb)}, v6")
        for k in range(8): A(f"v_add_f32 {vr(V_L + qb)}, {vr(V_L + qb)}, {vr(s + k)}")
        for k in range(1, 8, 2): A(cvt_i(8 * qb + k, 0))
        for k in range(32): A(f"v_mul_f32 {vr(V_O + 32*qb + k)}, {vr(V_O + 32*qb + k)}, v6")
    A("s_waitcnt lgkmcnt(0)")
    A("s_nop 1")
    for qb in range(4):
        for t in range(8): A(mfma_pv(qb, t, 0))
    A("s_add_u32 s50, s50, 0x2000")
    A("s_cmp_lt_u32 s50, 0x80000")
    A("s_nop 7")
    A("s_cbranch_scc1 L_slow_loop")
    for qb in range(4):
        l = vr(V_L + qb)
        A(f"v_mov_b32 v5, {l}")
        A("s_nop 1")
        A(f"v_permlane32_swap_b32 {l}, v5")
        A(f"v_add_f32 {l}, {l}, v5")
        A(f"v_mov_b32 v5, {l}")
        A("s_nop 1")
        A(f"v_permlane16_swap_b32 {l}, v5")
        A(f"v_add_f32 {l}, {l}, v5")
        A(f"v_rcp_f32 {vr(12 + 2*qb)}, {l}")
        A("s_nop 0")
        A(f"v_mov_b32 {vr(13 + 2*qb)}, {vr(12 + 2*qb)}")
    so = Opt(); so.__dict__.update(o.__dict__); so.stamps = 0
    L += finish(so, 0)
    A("s_branch L_fin")
    return L

def build(o):
    pro = prologue(o)
    tiles = [step(o, 0, u, u) + step(o, 1, u, u) for u in range(4)]
    exitb = ["s_cbranch_scc1 L_tail"]
    back = []
    stamp(o, back)
    back.append("s_branch L_loop")
    tl = step(o, 0, 3, 3, tail=True)
    tl += tail(o, tl)
    slow = slowpath(o)
    body = tiles[0] + tiles[1] + tiles[2] + exitb + tiles[3] + back
    ex = pro + body + tiles[0] + tiles[1] + tiles[2] + exitb + tl
    e1 = check([I(t) for t in ex], "main")
    i0 = slow.index("L_slow_loop:"); i1 = slow.index("s_cbranch_scc1 L_slow_loop")
    ie = max(i for i, t in enumerate(tl) if "L_slow" in t)
    e2 = check([I(t) for t in tiles[2] + tl[:ie + 1] + slow[:i1 + 1] + slow[i0:]], "slow")
    lines = pro + [f".p2align {o.align}", "L_loop:"] + body + [".p2align 3", "L_tail:"] + tl + slow
    txt = "\n".join(("" if t.endswith(":") or t.startswith(".") else "  ") + t for t in lines)
    return wrap(txt, grid=256, block=256, lds=163840, vgpr=512, accum=256, sgpr=96), (e1 or e2)

if __name__ == "__main__":
    ap = argparse.ArgumentParser()
    ap.add_argument("-o", default="k.s")
    ap.add_argument("set", nargs="*")
    a = ap.parse_args()
    o = Opt()
    for kv in a.set:
        k, v = kv.split("=")
        assert hasattr(o, k), k
        setattr(o, k, int(v, 0))
    txt, err = build(o)
    open(a.o, "w").write(txt)
    print("wrote", a.o, "ERRORS" if err else "clean")
```
